```python
import torch

def _softmax(x, axis=-1):
    return torch.softmax(x, dim=axis)
def _gelu(x):
    return torch.nn.functional.gelu(x, approximate="tanh")
def _silu(x):
    return torch.nn.functional.silu(x)
def _sigmoid(x):
    return torch.sigmoid(x)
def _layernorm(x, axis=-1, eps=1e-5):
    m = x.mean(dim=axis, keepdim=True)
    v = x.var(dim=axis, keepdim=True, unbiased=False)
    return (x - m) / torch.sqrt(v + eps)
def _scatter_add(tgt, idx, src, axis=0):
    return tgt.clone().index_add_(axis, idx, src)
def _segment_sum(src, seg, n):
    out = torch.zeros((n,) + src.shape[1:], dtype=src.dtype)
    return out.index_add_(0, seg, src)
def _pad(x, pw):
    flat = tuple(v for pair in reversed(pw) for v in pair)
    return torch.nn.functional.pad(x, flat)

kernel_name = 'sequential_preLN__ssm_conv_h3__glu_gated_geglu__prompt'

def setup_inputs():

    _w = (lambda a: (lambda t: t.to(torch.bfloat16) if t.is_floating_point() else t)(torch.as_tensor(a)))
    def _A_setup():
        B, S, D = 1, 2048, 640
        ks = 4
        return {
            "q": _w((lambda *s: torch.randn(*s, dtype=torch.bfloat16) * 0.05)(B, S, D)),
            "k": _w((lambda *s: torch.randn(*s, dtype=torch.bfloat16) * 0.2)(B, S, D)),
            "v": _w((lambda *s: torch.randn(*s, dtype=torch.bfloat16) * 0.2)(B, S, D)),
            "shift_k": _w((lambda *s: torch.randn(*s, dtype=torch.bfloat16) * 0.2)(D, ks) * 0.5),
            "ssm_k": _w((lambda *s: torch.randn(*s, dtype=torch.bfloat16) * 0.4)(D, S) * (1.0 / S ** 0.5)),
            "ssm_D": _w((lambda *s: torch.randn(*s, dtype=torch.bfloat16) * 0.2)(D)),
        }
    _A_in = _A_setup()

    def _B_setup():
        B, S, Dm, Df = 1, 2048, 640, 1536
        return {
            "x": _w((lambda *s: torch.randn(*s, dtype=torch.bfloat16) * 0.05)(B, S, Dm)),
            "w_gate": _w((lambda *s: torch.randn(*s, dtype=torch.bfloat16) * 0.4)(Dm, Df) * (Dm ** -0.5)),
            "w_up": _w((lambda *s: torch.randn(*s, dtype=torch.bfloat16) * 0.4)(Dm, Df) * (Dm ** -0.5)),
            "w_down": _w((lambda *s: torch.randn(*s, dtype=torch.bfloat16) * 0.4)(Df, Dm) * (Df ** -0.5)),
        }
    _B_in = _B_setup()

    return {
        "A_q": _A_in["q"],
        "A_k": _A_in["k"],
        "A_v": _A_in["v"],
        "A_shift_k": _A_in["shift_k"],
        "A_ssm_k": _A_in["ssm_k"],
        "A_ssm_D": _A_in["ssm_D"],
        "B_x": _B_in["x"],
        "B_w_gate": _B_in["w_gate"],
        "B_w_up": _B_in["w_up"],
        "B_w_down": _B_in["w_down"],
    }

def reference(A_q, A_k, A_v, A_shift_k, A_ssm_k, A_ssm_D, B_x, B_w_gate, B_w_up, B_w_down):
    def _A_ref(q, k, v, shift_k, ssm_k, ssm_D):
        B, S, D = q.shape
        ks = shift_k.shape[-1]
        k_pad = _pad(k, ((0, 0), (ks - 1, 0), (0, 0)))
        k_shift = torch.zeros_like(k)
        for t in range(ks):
            k_shift = k_shift + k_pad[:, t:t + S, :] * shift_k[:, ks - 1 - t][None, None, :]
        kv = k_shift * v
        L = 2 * S
        kv_pad = _pad(kv, ((0, 0), (0, S), (0, 0)))
        kf_pad = _pad(ssm_k, ((0, 0), (0, S)))
        kv_f = (lambda x, axes=(-2,-1): torch.fft.rfft2(x.float(), dim=axes))(kv_pad[:, None, :, :], axes=(1, 2))
        kf_f = (lambda x, axes=(-2,-1): torch.fft.rfft2(x.float(), dim=axes))(kf_pad[:, None, :], axes=(1, 2))
        kf_f = (lambda x, *d: x.permute(*d))(kf_f, 1, 2, 0)
        y_f = kv_f * kf_f[None, :, :, :]
        y = (lambda x, s, axes=(-2,-1): torch.fft.irfft2(x, s=s, dim=axes).to(torch.bfloat16))(y_f, (1, L), axes=(1, 2))[:, 0, :S, :]
        y = y + kv * ssm_D[None, None, :]
        return q * y

    def _B_ref(x, w_gate, w_up, w_down):
        g = torch.einsum("bsd,df->bsf", x, w_gate)
        u = torch.einsum("bsd,df->bsf", x, w_up)
        h = _gelu(g) * u
        return torch.einsum("bsf,fd->bsd", h, w_down)

    x = A_q
    h = x + _A_ref(_layernorm(x, axis=-1), A_k, A_v, A_shift_k, A_ssm_k, A_ssm_D)
    h2 = h + _B_ref(_layernorm(h, axis=-1), B_w_gate, B_w_up, B_w_down)
    return h2
```

```python
KVR=0x000000; XT=0x280000; HT=0x500000; ST1=0x780000; CS=0x782000; HH=0x800000
class Asm:
    def __init__(s): s.l=[]; s.n=0
    def __call__(s, t):
        for x in t.strip('\n').split('\n'): s.l.append('    '+x.strip())
    def lab(s, n): s.l.append(n+':')
    def uid(s, p): s.n+=1; return f'L_{p}_{s.n}'
    def srd(s, d, base, off, nrec, offs=None):
        if offs is not None:
            s(f's_add_u32 s{d}, s{base}, s{offs}\ns_addc_u32 s{d+1}, s{base+1}, 0')
            if off: s(f's_add_u32 s{d}, s{d}, {off}\ns_addc_u32 s{d+1}, s{d+1}, 0')
        elif off: s(f's_add_u32 s{d}, s{base}, {off}\ns_addc_u32 s{d+1}, s{base+1}, 0')
        else: s(f's_mov_b32 s{d}, s{base}\ns_mov_b32 s{d+1}, s{base+1}')
        s(f's_mov_b32 s{d+2}, {nrec}\ns_mov_b32 s{d+3}, 0x00020000')
    def head(s, name):
        s.l += ['.p2align 8', f'.globl {name}', f'.type {name},@function', f'{name}:']
    def text(s): return '\n'.join(s.l)+'\n'
def desc(name, vgpr, sgpr=96):
    acc=(vgpr+3)//4*4
    return f'''.p2align 6
.amdhsa_kernel {name}
  .amdhsa_next_free_vgpr {vgpr}
  .amdhsa_next_free_sgpr {sgpr}
  .amdhsa_accum_offset {acc}
  .amdhsa_group_segment_fixed_size 0
  .amdhsa_kernarg_size 104
  .amdhsa_user_sgpr_count 2
  .amdhsa_user_sgpr_kernarg_segment_ptr 1
  .amdhsa_system_sgpr_workgroup_id_x 1
.end_amdhsa_kernel
'''
def wave_reduce(a, regs):
    for m in ['quad_perm:[1,0,3,2] row_mask:0xf bank_mask:0xf','quad_perm:[2,3,0,1] row_mask:0xf bank_mask:0xf',
              'row_half_mirror row_mask:0xf bank_mask:0xf','row_mirror row_mask:0xf bank_mask:0xf',
              'row_bcast:15 row_mask:0xa bank_mask:0xf','row_bcast:31 row_mask:0xc bank_mask:0xf']:
        a('s_nop 1')
        for r in regs: a(f'v_add_f32_dpp v{r}, v{r}, v{r} {m}')
    a('s_nop 1')
```

```python
from common import *
def gen_k0(a):
    a.head('k0_kernel')
    a('''s_cmp_ge_u32 s2, 256
    s_cbranch_scc1 L_k0_end
    s_load_dwordx4 s[4:7], s[0:1], 0
    s_load_dwordx4 s[8:11], s[0:1], 16
    s_load_dwordx2 s[12:13], s[0:1], 96
    s_and_b32 s14, s2, 7
    s_lshr_b32 s15, s2, 3
    s_and_b32 s16, s15, 7
    s_lshl_b32 s14, s14, 3
    s_add_u32 s14, s14, s16
    s_lshr_b32 s15, s15, 3
    v_and_b32 v1, 3, v0
    v_lshrrev_b32 v2, 2, v0
    s_lshl_b32 s16, s14, 5
    v_lshl_add_u32 v3, v1, 3, s16
    s_mul_i32 s17, s15, 160
    v_lshl_add_u32 v4, v2, 1, s17
    s_movk_i32 s18, 1280
    v_mul_lo_u32 v5, v3, s18
    v_lshl_add_u32 v5, v4, 1, v5
    v_subrev_u32 v6, 3840, v5
    v_lshlrev_b32 v7, 3, v4
    s_movk_i32 s40, 3840
    s_movk_i32 s41, 7680
    v_lshrrev_b32 v8, 6, v0
    v_and_b32 v9, 63, v0
    s_waitcnt lgkmcnt(0)''')
    a.srd(20,4,0,2621440); a.srd(24,6,0,2621440); a.srd(28,8,0,2621440); a.srd(32,10,0,5120); a.srd(36,12,0,0x800000)
    a('v_readfirstlane_b32 s19, v8')
    def rowld(dst, srd, j):
        so=['0','s40','s41'][j//3]; a(f'buffer_load_dword v{dst}, v5, s[{srd}:{srd+3}], {so} offen offset:{(j%3)*1280}')
    a('buffer_load_dwordx4 v[12:15], v7, s[32:35], 0 offen')
    for j in range(3): a(f'buffer_load_dword v{16+j}, v6, s[24:27], 0 offen offset:{j*1280}')
    for j in range(8): rowld(19+j,24,j)
    for j in range(8): rowld(27+j,28,j)
    for j in range(8): rowld(35+j,20,j)
    a('''s_min_u32 s42, s19, 3
    s_lshl_b32 s43, s2, 3
    s_lshl_b32 s42, s42, 1
    s_add_u32 s42, s42, s43
    s_mul_i32 s43, s42, 1280
    v_lshl_add_u32 v10, v9, 2, s43''')
    for r in range(2):
        for i in range(5): a(f'buffer_load_dword v{44+5*r+i}, v10, s[20:23], 0 offen offset:{r*1280+i*256}')
    a(f'''v_lshlrev_b32 v11, 12, v4
    v_lshlrev_b32 v1, 1, v3
    v_sub_u32 v2, v11, v1
    v_add_u32 v2, 4080, v2
    v_add_u32 v1, v11, v1
    v_add_u32 v1, {XT}, v1
    s_mov_b32 s44, 0x05040100
    s_mov_b32 s45, 0x07060302
    s_movk_i32 s46, 4096
    s_waitcnt vmcnt(26)''')
    for i in range(4):
        a(f'v_lshlrev_b32 v{56+2*i}, 16, v{12+i}\nv_and_b32 v{57+2*i}, 0xffff0000, v{12+i}')
    for j in range(11):
        a(f'v_lshlrev_b32 v{64+j}, 16, v{16+j}\nv_and_b32 v{75+j}, 0xffff0000, v{16+j}')
    for ch in range(2):
        kb=64+11*ch; wb=56+4*ch
        for j in range(8):
            d=88+8*ch+j
            a(f'v_mul_f32 v{d}, v{kb+j}, v{wb+3}')
        for tap in (2,1,0):
            for j in range(8):
                d=88+8*ch+j
                a(f'v_fmac_f32 v{d}, v{kb+j+3-tap}, v{wb+tap}')
    a('s_waitcnt vmcnt(18)')
    for j in range(8):
        a(f'v_lshlrev_b32 v{64+j}, 16, v{27+j}\nv_and_b32 v{72+j}, 0xffff0000, v{27+j}')
    for ch in range(2):
        for j in range(8): a(f'v_mul_f32 v{88+8*ch+j}, v{88+8*ch+j}, v{64+8*ch+j}')
    for ch in range(2):
        for i in range(4): a(f'v_cvt_pk_bf16_f32 v{104+4*ch+i}, v{88+8*ch+7-2*i}, v{88+8*ch+6-2*i}')
    a('''buffer_store_dwordx4 v[104:107], v2, s[36:39], 0 offen
    buffer_store_dwordx4 v[108:111], v2, s[36:39], s46 offen
    s_waitcnt vmcnt(12)''')
    for i in range(4):
        a(f'v_perm_b32 v{112+i}, v{36+2*i}, v{35+2*i}, s44\nv_perm_b32 v{116+i}, v{36+2*i}, v{35+2*i}, s45')
    a('''buffer_store_dwordx4 v[112:115], v1, s[36:39], 0 offen
    buffer_store_dwordx4 v[116:119], v1, s[36:39], s46 offen
    s_cmp_ge_u32 s19, 4
    s_cbranch_scc1 L_k0_end
    s_waitcnt vmcnt(4)''')
    for r in range(2):
        for i in range(5):
            a(f'v_lshlrev_b32 v{64+10*r+2*i}, 16, v{44+5*r+i}\nv_and_b32 v{65+10*r+2*i}, 0xffff0000, v{44+5*r+i}')
    for r in range(2): a(f'v_add_f32 v{12+r}, v{64+10*r}, v{65+10*r}')
    for i in range(2,10):
        for r in range(2): a(f'v_add_f32 v{12+r}, v{12+r}, v{64+10*r+i}')
    wave_reduce(a,[12,13])
    a('''v_readlane_b32 s47, v12, 63
    v_readlane_b32 s48, v13, 63
    s_mov_b32 s49, 0x3acccccd
    s_nop 0
    v_mov_b32 v12, s47
    v_mov_b32 v13, s48
    v_mul_f32 v12, s49, v12
    v_mul_f32 v13, s49, v13''')
    for i in range(10):
        for r in range(2): a(f'v_sub_f32 v{64+10*r+i}, v{64+10*r+i}, v{12+r}')
    for r in range(2): a(f'v_mul_f32 v{14+r}, v{64+10*r}, v{64+10*r}')
    for i in range(1,10):
        for r in range(2): a(f'v_fmac_f32 v{14+r}, v{64+10*r+i}, v{64+10*r+i}')
    wave_reduce(a,[14,15])
    a(f'''v_readlane_b32 s47, v14, 63
    v_readlane_b32 s48, v15, 63
    s_nop 1
    v_mov_b32 v14, s47
    v_mov_b32 v15, s48
    v_mul_f32 v14, s49, v14
    v_mul_f32 v15, s49, v15
    v_cvt_pk_bf16_f32 v16, v14, v15
    v_lshlrev_b32 v14, 16, v16
    v_and_b32 v15, 0xffff0000, v16
    v_add_f32 v14, 0x3727c5ac, v14
    v_add_f32 v15, 0x3727c5ac, v15
    v_cvt_pk_bf16_f32 v16, v14, v15
    v_lshlrev_b32 v14, 16, v16
    v_and_b32 v15, 0xffff0000, v16
    v_sqrt_f32 v14, v14
    v_sqrt_f32 v15, v15
    s_lshl_b32 s42, s42, 2
    s_add_u32 s42, s42, {ST1}
    v_cvt_pk_bf16_f32 v16, v12, v14
    v_cvt_pk_bf16_f32 v17, v13, v15
    v_mov_b32 v18, s42
    s_mov_b64 exec, 1
    buffer_store_dwordx2 v[16:17], v18, s[36:39], 0 offen''')
    a.lab('L_k0_end'); a('s_endpgm')
    return desc('k0_kernel',120,64)
```

```python
from common import *
CSZ=4128
NCS=48
def rnd(a, x, y, t):
    a(f'v_cvt_pk_bf16_f32 v{t}, v{x}, v{y}\nv_lshlrev_b32 v{x}, 16, v{t}\nv_and_b32 v{y}, 0xffff0000, v{t}')
def gen_k1(a):
    a.head('k1_kernel')
    a(f'''s_cmp_ge_u32 s2, {NCS+640}
    s_cbranch_scc1 L_k1_end
    s_load_dwordx4 s[4:7], s[0:1], 32
    s_load_dwordx4 s[8:11], s[0:1], 56
    s_load_dwordx2 s[12:13], s[0:1], 96
    v_and_b32 v1, 63, v0
    v_lshrrev_b32 v2, 6, v0
    s_cmp_lt_u32 s2, {NCS}
    s_cbranch_scc1 L_k1_cs
    s_sub_u32 s14, s2, {NCS}
    s_lshl_b32 s15, s14, 12
    s_lshl_b32 s16, s14, 1
    s_and_b32 s17, s16, 2
    s_and_b32 s16, s16, -4
    v_readfirstlane_b32 s18, v2
    v_lshlrev_b32 v3, 4, v0
    v_subrev_u32 v4, 32, v3
    v_subrev_u32 v5, 16, v3
    v_and_b32 v6, 15, v0
    v_bfe_u32 v7, v0, 4, 2
    s_waitcnt lgkmcnt(0)
    s_load_dword s19, s[6:7], s16''')
    a.srd(20,4,0,4096,15); a.srd(24,12,KVR,4096,15); a.srd(28,12,0,0x800000)
    a('''buffer_load_dwordx4 v[10:13], v4, s[20:23], 0 offen
    buffer_load_dwordx4 v[14:17], v5, s[20:23], 0 offen
    v_lshlrev_b32 v8, 4, v7
    v_lshl_add_u32 v8, v2, 7, v8
    v_lshlrev_b32 v9, 5, v6
    v_sub_u32 v8, v8, v9
    v_add_u32 v8, 480, v8''')
    for r in range(2):
        for b in range(8):
            R=74+32*r+4*b
            a(f'buffer_load_dwordx4 v[{R}:{R+3}], v8, s[24:27], 0 offen offset:{3584-512*b+64*r}')
    a(f'''v_lshlrev_b32 v9, 4, v6
    v_lshl_add_u32 v9, v7, 2, v9
    v_lshl_add_u32 v9, v2, 9, v9
    v_lshlrev_b32 v154, 1, v9
    v_sub_u32 v155, 3576, v154
    v_lshlrev_b32 v156, 2, v9
    s_add_u32 s32, s15, {XT}
    s_add_u32 s33, s15, {HT}
    s_mov_b32 s34, {ST1}
    buffer_load_dwordx2 v[138:139], v154, s[28:31], s32 offen
    buffer_load_dwordx2 v[140:141], v154, s[28:31], s32 offen offset:512
    buffer_load_dwordx2 v[142:143], v155, s[24:27], 0 offen offset:512
    buffer_load_dwordx2 v[144:145], v155, s[24:27], 0 offen
    buffer_load_dwordx4 v[146:149], v156, s[28:31], s34 offen
    buffer_load_dwordx4 v[150:153], v156, s[28:31], s34 offen offset:1024''')
    def build(off):
        for j in range(6): a(f'v_mov_b32 v{18+j}, v{11+j}')
        for j in range(6): a(f'v_alignbit_b32 v{26+j}, v{11+j}, v{10+j}, 16')
        for j in range(6): a(f'v_alignbit_b32 v{32+j}, v{12+j}, v{11+j}, 16')
        for c,R in enumerate([10,26,18,32,12,28,20,34]):
            a(f'ds_write_b128 v3, v[{R}:{R+3}] offset:{c*CSZ+off}')
    a('s_waitcnt vmcnt(22)')
    build(0)
    a('''s_cmp_lg_u32 s18, 0
    s_cbranch_scc1 L_k1_nx
    s_mov_b64 exec, 3
    s_nop 2
    buffer_load_dwordx4 v[10:13], v3, s[20:23], 0 offen offset:4064
    buffer_load_dwordx4 v[14:17], v3, s[20:23], 0 offen offset:4080
    s_waitcnt vmcnt(0)''')
    build(4096)
    a('s_mov_b64 exec, -1')
    a.lab('L_k1_nx')
    a(f'''v_add_u32 v4, 1, v6
    v_and_b32 v5, 7, v4
    v_lshrrev_b32 v4, 3, v4
    v_add_u32 v4, v4, v7
    v_lshlrev_b32 v4, 4, v4
    v_mov_b32 v1, {CSZ}
    v_mad_u32_u24 v4, v5, v1, v4
    v_lshl_add_u32 v4, v2, 7, v4
    s_waitcnt lgkmcnt(0)
    s_barrier''')
    def rd(bt):
        r=bt>>1
        for i in range(4):
            av=4*(bt&1)+i; R=10+16*(bt&1)+4*i
            a(f'ds_read_b128 v[{R}:{R+3}], v4 offset:{64*r+512*av}')
    rd(0); rd(1)
    seen=set()
    for bt in range(4):
        r=bt>>1
        if bt==0: a('s_waitcnt lgkmcnt(4) vmcnt(14)')
        elif bt==2: a('s_waitcnt lgkmcnt(4) vmcnt(6)')
        elif bt==1: a('s_waitcnt lgkmcnt(4)')
        else: a('s_waitcnt lgkmcnt(0)')
        for i in range(4):
            av=4*(bt&1)+i; A=10+16*(bt&1)+4*i
            for b in range(8-av):
                I=av+b; C=42+4*I; B=74+32*r+4*b
                src=f'v[{C}:{C+3}]' if I in seen else '0'; seen.add(I)
                a(f'v_mfma_f32_16x16x32_bf16 v[{C}:{C+3}], v[{A}:{A+3}], v[{B}:{B+3}], {src}')
        if bt<2: rd(bt+2)
    a('''v_and_b32 v1, 63, v0
    v_lshlrev_b32 v1, 4, v1
    v_lshl_add_u32 v5, v2, 13, v1
    v_lshl_add_u32 v1, v2, 11, v1
    s_nop 4
    s_barrier''')
    for I in range(8): a(f'ds_write_b128 v5, v[{42+4*I}:{45+4*I}] offset:{1024*I}')
    a('s_waitcnt lgkmcnt(0)\ns_barrier')
    for I in range(2):
        for w in range(4): a(f'ds_read_b128 v[{74+16*I+4*w}:{77+16*I+4*w}], v1 offset:{8192*w+1024*I}')
    a('''s_lshl_b32 s17, s17, 3
    s_lshr_b32 s19, s19, s17
    s_lshl_b32 s19, s19, 16
    s_waitcnt vmcnt(0)''')
    for I in range(2):
        for h in range(2):
            a(f'v_lshlrev_b32 v{10+4*I+2*h}, 16, v{138+2*I+h}\nv_and_b32 v{11+4*I+2*h}, 0xffff0000, v{138+2*I+h}')
            a(f'v_lshlrev_b32 v{18+4*I+3-2*h}, 16, v{142+2*I+h}\nv_and_b32 v{18+4*I+2-2*h}, 0xffff0000, v{142+2*I+h}')
    for e in range(8):
        a(f'v_lshlrev_b32 v{26+e}, 16, v{146+e}\nv_and_b32 v{34+e}, 0xffff0000, v{146+e}')
    for e in range(8): a(f'v_rcp_f32 v{34+e}, v{34+e}')
    for e in range(8): a(f'v_sub_f32 v{26+e}, v{10+e}, v{26+e}\nv_mul_f32 v{18+e}, s19, v{18+e}')
    for e in range(0,8,2): rnd(a,26+e,27+e,2); rnd(a,18+e,19+e,3)
    for e in range(8): a(f'v_mul_f32 v{26+e}, v{26+e}, v{34+e}')
    for e in range(0,8,2): rnd(a,26+e,27+e,2)
    a('s_waitcnt lgkmcnt(0)')
    for I in range(2):
        b=74+16*I
        for j in range(0,4,2):
            a(f'v_pk_add_f32 v[{b+j}:{b+j+1}], v[{b+j}:{b+j+1}], v[{b+4+j}:{b+5+j}]')
            a(f'v_pk_add_f32 v[{b+8+j}:{b+9+j}], v[{b+8+j}:{b+9+j}], v[{b+12+j}:{b+13+j}]')
        for j in range(0,4,2):
            a(f'v_pk_add_f32 v[{b+j}:{b+j+1}], v[{b+j}:{b+j+1}], v[{b+8+j}:{b+9+j}]')
    Y=lambda e: 74+16*(e>>2)+(e&3)
    for e in range(0,8,2): rnd(a,Y(e),Y(e+1),2+(e>>1&1))
    for e in range(8): a(f'v_add_f32 v{18+e}, v{18+e}, v{Y(e)}')
    for e in range(0,8,2): rnd(a,18+e,19+e,2+(e>>1&1))
    for e in range(8): a(f'v_mul_f32 v{18+e}, v{18+e}, v{26+e}')
    for e in range(0,8,2): rnd(a,18+e,19+e,2+(e>>1&1))
    for e in range(8): a(f'v_add_f32 v{18+e}, v{18+e}, v{10+e}')
    for e in range(0,8,2): a(f'v_cvt_pk_bf16_f32 v{26+e//2}, v{18+e}, v{19+e}')
    a('''buffer_store_dwordx2 v[26:27], v154, s[28:31], s33 offen
    buffer_store_dwordx2 v[28:29], v154, s[28:31], s33 offen offset:512
    s_endpgm''')
    a.lab('L_k1_cs')
    a('''s_cmp_ge_u32 s2, 24
    s_cselect_b32 s14, 24, 0
    s_sub_u32 s14, s2, s14
    s_waitcnt lgkmcnt(0)
    s_cmp_ge_u32 s2, 24
    s_cselect_b32 s8, s10, s8
    s_cselect_b32 s9, s11, s9''')
    a.srd(20,8,0,1966080); a.srd(28,12,0,0x800000)
    a('''v_lshrrev_b32 v3, 3, v0
    v_and_b32 v4, 7, v0
    v_mul_u32_u24 v5, 3072, v3
    v_lshl_add_u32 v5, v4, 4, v5
    s_lshl_b32 s15, s14, 7''')
    for i in range(20):
        a(f'buffer_load_dwordx4 v[{20+4*i}:{23+4*i}], v5, s[20:23], s15 offen\ns_add_u32 s15, s15, {32*3072}')
    for j in range(8): a(f'v_mov_b32 v{10+j}, 0')
    for i in range(20):
        a(f's_waitcnt vmcnt({19-i})')
        for j in range(4):
            R=20+4*i+j
            a(f'v_lshlrev_b32 v6, 16, v{R}\nv_and_b32 v7, 0xffff0000, v{R}\nv_pk_add_f32 v[{10+2*j}:{11+2*j}], v[{10+2*j}:{11+2*j}], v[6:7]')
    a('''v_lshlrev_b32 v5, 5, v0
    ds_write_b128 v5, v[10:13]
    ds_write_b128 v5, v[14:17] offset:16
    s_waitcnt lgkmcnt(0)
    s_barrier
    v_readfirstlane_b32 s18, v2
    s_cmp_lg_u32 s18, 0
    s_cbranch_scc1 L_k1_end
    v_lshlrev_b32 v5, 2, v0''')
    for i in range(32): a(f'ds_read_b32 v{20+i}, v5 offset:{256*i}')
    a('s_waitcnt lgkmcnt(0)')
    for st in (16,8,4,2,1):
        for i in range(st): a(f'v_add_f32 v{20+i}, v{20+i}, v{20+st+i}')
    a(f'''s_lshl_b32 s15, s2, 8
    s_add_u32 s15, s15, {CS}
    buffer_store_dword v20, v5, s[28:31], s15 offen''')
    a.lab('L_k1_end'); a('s_endpgm')
    return desc('k1_kernel',160,64)
```

```python
from common import *
NS=7; SL=20480; PST=NS*SL; FST=PST+16384; K2LDS=FST+2048
def gen_k2(a):
    a.head('k2_kernel')
    a(f'''s_cmp_ge_u32 s2, 256
    s_cbranch_scc1 L_k2_end
    s_load_dwordx4 s[8:11], s[0:1], 56
    s_load_dwordx2 s[12:13], s[0:1], 96
    s_and_b32 s14, s2, 7
    s_lshr_b32 s15, s2, 3
    s_and_b32 s16, s14, 1
    s_lshl_b32 s16, s16, 3
    s_and_b32 s17, s15, 7
    s_add_u32 s16, s16, s17
    s_lshr_b32 s17, s14, 1
    s_lshl_b32 s17, s17, 2
    s_lshr_b32 s15, s15, 3
    s_add_u32 s17, s17, s15
    v_lshrrev_b32 v2, 6, v0
    v_and_b32 v1, 63, v0
    s_nop 0
    v_readfirstlane_b32 s18, v2
    s_waitcnt lgkmcnt(0)''')
    a.srd(28,12,0,0x1000000)
    a('s_cmp_ge_u32 s18, 4\ns_cbranch_scc1 L_k2_ld')
    a(f'''s_and_b32 s19, s18, 1
    s_lshr_b32 s20, s18, 1
    v_lshrrev_b32 v3, 2, v1
    v_and_b32 v4, 3, v1
    v_lshlrev_b32 v4, 3, v4
    v_lshl_add_u32 v5, v3, 8, v4
    v_and_b32 v6, 7, v3
    v_mul_u32_u24 v7, 192, v3
    v_add_u32 v7, v7, v4
    v_add_u32 v7, 8192, v7
    v_bfe_u32 v8, v3, 2, 1
    s_lshl_b32 s21, s19, 2
    s_lshl_b32 s22, s20, 2
    s_add_u32 s23, s22, 1
    s_add_u32 s24, s20, 2''')
    for jj in range(4):
        a(f'''s_add_u32 s25, s21, {jj}
        v_xor_b32 v9, s25, v6
        v_lshl_add_u32 v{10+jj}, v9, 5, v5
        v_add_u32 v{14+jj}, {3*SL}, v{10+jj}
        v_add_u32 v{18+jj}, {6*SL}, v{10+jj}''')
    a(f'''v_lshrrev_b32 v3, 4, v1
    v_lshlrev_b32 v3, 4, v3
    s_mul_i32 s25, s17, 384
    s_add_u32 s25, s25, {CS}''')
    for ii in range(3):
        a(f'''v_xor_b32 v9, s{22+ii}, v8
        v_lshl_add_u32 v{22+ii}, v9, 5, v7
        v_add_u32 v{25+ii}, {3*SL}, v{22+ii}
        v_add_u32 v{28+ii}, {6*SL}, v{22+ii}
        s_lshl_b32 s26, s{22+ii}, 6
        s_add_u32 s26, s26, s25
        s_add_u32 s27, s26, 6144
        buffer_load_dwordx4 v[{32+8*ii}:{35+8*ii}], v3, s[28:31], s26 offen
        buffer_load_dwordx4 v[{36+8*ii}:{39+8*ii}], v3, s[28:31], s27 offen''')
    def reads(s):
        sl=s%NS; st=sl//3; o=(sl%3)*SL; fb=152+40*(s&1); L=[]
        for ii in range(3):
            for gu in range(2):
                for h in range(2):
                    R=fb+16+12*gu+4*ii+2*h
                    L.append(f'ds_read_b64_tr_b16 v[{R}:{R+1}], v{22+3*st+ii} offset:{o+6144*gu+3072*h}')
        for jj in range(4):
            for h in range(2):
                R=fb+4*jj+2*h
                L.append(f'ds_read_b64_tr_b16 v[{R}:{R+1}], v{10+4*st+jj} offset:{o+4096*h}')
        return L
    def mfmas(s):
        fb=152+40*(s&1); L=[]
        for jj in range(4):
            for ii in range(3):
                for gu in range(2):
                    C=56+(jj*3+ii)*8+4*gu; A=fb+16+12*gu+4*ii; B=fb+4*jj
                    src='0' if s==0 else f'v[{C}:{C+3}]'
                    L.append(f'v_mfma_f32_16x16x32_bf16 v[{C}:{C+3}], v[{A}:{A+3}], v[{B}:{B+3}], {src}')
        return L
    a('s_setprio 2')
    for s in range(21):
        a('s_barrier')
        R=reads(s) if s<20 else []; M=mfmas(s-1) if s>0 else []
        while R or M:
            if M: a(M.pop(0))
            if R: a(R.pop(0))
        if s<20: a('s_waitcnt lgkmcnt(0)')
    a(f'''v_and_b32 v3, 15, v1
    v_lshlrev_b32 v3, 4, v3
    s_lshl_b32 s21, s19, 10
    s_add_u32 s21, s21, {FST}
    v_add_u32 v3, s21, v3
    s_lshl_b32 s21, s16, 3
    s_lshl_b32 s22, s19, 2
    s_add_u32 s21, s21, s22
    s_mul_i32 s21, s21, 48
    s_mul_i32 s22, s17, 3
    s_add_u32 s21, s21, s22
    s_lshl_b32 s21, s21, 10
    s_add_u32 s21, s21, {HH}
    s_lshl_b32 s22, s20, 11
    s_lshl_b32 s23, s20, 3
    s_add_u32 s23, s23, 1024
    v_lshlrev_b32 v4, 4, v1
    v_add_u32 v5, s23, v4
    v_add_u32 v4, s22, v4
    s_mov_b32 s32, 0xc0135761
    s_mov_b32 s33, 0xc0135761
    s_mov_b32 s34, 0xbdd2d3e8
    s_mov_b32 s35, 0xbdd2d3e8
    s_barrier''')
    for jj in range(4): a(f'ds_read_b128 v[{152+4*jj}:{155+4*jj}], v3 offset:{256*jj}')
    a('v_mov_b32 v6, s32\nv_mov_b32 v7, s33\ns_waitcnt lgkmcnt(0) vmcnt(0)')
    for jj in range(4):
        S=152+4*jj
        P=[(56+(jj*3+ii)*8+2*h, 32+8*ii+2*h) for ii in range(3) for h in range(2)]
        T=lambda i: 168+2*i
        for g,c in P: a(f'v_pk_fma_f32 v[{g}:{g+1}], v[{c}:{c+1}], v[{S}:{S+1}], v[{g}:{g+1}] op_sel_hi:[1,0,1]')
        for g,c in P: a(f'v_pk_fma_f32 v[{g+4}:{g+5}], v[{c+4}:{c+5}], v[{S}:{S+1}], v[{g+4}:{g+5}] op_sel_hi:[1,0,1]')
        for g,c in P: a(f'v_pk_mul_f32 v[{g+4}:{g+5}], v[{g+4}:{g+5}], v[{g}:{g+1}]')
        for g,c in P: a(f'v_pk_mul_f32 v[{g}:{g+1}], v[{g}:{g+1}], v[{S}:{S+1}] op_sel:[0,1] op_sel_hi:[1,1]')
        for i,(g,c) in enumerate(P): a(f'v_pk_mul_f32 v[{T(i)}:{T(i)+1}], v[{g}:{g+1}], v[{g}:{g+1}]')
        for i,(g,c) in enumerate(P): a(f'v_pk_fma_f32 v[{T(i)}:{T(i)+1}], v[{T(i)}:{T(i)+1}], s[34:35], v[6:7]')
        for i,(g,c) in enumerate(P): a(f'v_pk_mul_f32 v[{T(i)}:{T(i)+1}], v[{T(i)}:{T(i)+1}], v[{g}:{g+1}]')
        for i in range(12): a(f'v_exp_f32 v{168+i}, v{168+i}')
        a('s_nop 0')
        for i,(g,c) in enumerate(P): a(f'v_pk_fma_f32 v[{T(i)}:{T(i)+1}], v[{T(i)}:{T(i)+1}], v[{S+2}:{S+3}], v[{S+2}:{S+3}] op_sel_hi:[1,0,0]')
        for i in range(12): a(f'v_rcp_f32 v{168+i}, v{168+i}')
        a('s_nop 0')
        for i,(g,c) in enumerate(P): a(f'v_pk_mul_f32 v[{T(i)}:{T(i)+1}], v[{T(i)}:{T(i)+1}], v[{g+4}:{g+5}]')
        O=184+8*jj
        for i in range(6): a(f'v_cvt_pk_bf16_f32 v{O+i}, v{T(i)}, v{T(i)+1}')
        a(f'''buffer_store_dwordx4 v[{O}:{O+3}], v4, s[28:31], s21 offen
        buffer_store_dwordx2 v[{O+4}:{O+5}], v5, s[28:31], s21 offen
        s_add_u32 s21, s21, 49152''')
    a('s_endpgm')
    a.lab('L_k2_ld')
    a('''s_sub_u32 s18, s18, 4
    s_cmp_ge_u32 s18, 2
    s_cselect_b32 s8, s10, s8
    s_cselect_b32 s9, s11, s9''')
    a.srd(20,8,0,1966080)
    a(f'''v_lshrrev_b32 v3, 4, v1
    v_and_b32 v4, 15, v1
    s_lshl_b32 s19, s18, 3
    s_lshl_b32 s24, s16, 8
    s_add_u32 s24, s24, {HT}
    s_mul_i32 s25, s17, 192
    s_lshl_b32 s26, s18, 11
    s_mul_i32 s27, s18, 3072
    s_add_u32 s27, s27, 8192
    s_and_b32 s32, s18, 1
    s_mul_i32 s32, s32, 192''')
    for pp in range(2):
        a(f'''v_add_u32 v5, {4*pp}, v3
        v_lshlrev_b32 v6, 1, v5
        v_xor_b32 v6, v6, v4
        v_add_u32 v5, s19, v5
        v_lshlrev_b32 v7, 12, v5
        v_lshl_add_u32 v{10+pp}, v6, 4, v7
        v_lshlrev_b32 v7, 8, v5
        v_lshl_add_u32 v{16+pp}, v6, 4, v7
        v_add_u32 v{18+pp}, {3*SL}, v{16+pp}
        v_add_u32 v{20+pp}, {6*SL}, v{16+pp}''')
    for pp in range(3):
        a(f'''v_add_u32 v5, s32, v1
        v_add_u32 v5, {64*pp}, v5
        v_mul_u32_u24 v6, 43691, v5
        v_lshrrev_b32 v6, 19, v6
        v_mul_u32_u24 v7, 12, v6
        v_sub_u32 v5, v5, v7
        v_bfe_u32 v7, v6, 2, 1
        v_lshlrev_b32 v7, 1, v7
        v_xor_b32 v5, v5, v7
        v_mul_u32_u24 v6, 3072, v6
        v_lshl_add_u32 v{12+pp}, v5, 4, v6''')
    def issue(s):
        sl=(s%NS)*SL
        for pp in range(2):
            a(f's_add_u32 m0, s26, {sl+1024*pp}\ns_nop 0\nbuffer_load_dwordx4 v{10+pp}, s[28:31], s24 offen lds')
        for pp in range(3):
            a(f's_add_u32 m0, s27, {sl+1024*pp}\ns_nop 0\nbuffer_load_dwordx4 v{12+pp}, s[20:23], s25 offen lds')
        a('s_add_u32 s24, s24, 131072\ns_add_u32 s25, s25, 98304')
    for s in range(NS): issue(s)
    last=NS-1
    for j in range(16): a(f'v_mov_b32 v{32+j}, 0')
    for s in range(20):
        a(f's_waitcnt vmcnt({5*(last-s)})\ns_barrier')
        sl=s%NS; st=sl//3; o=(sl%3)*SL
        for pp in range(2): a(f'ds_read_b128 v[{48+4*pp}:{51+4*pp}], v{16+2*st+pp} offset:{o}')
        if s>=1 and s-1+NS<20: issue(s-1+NS); last=s-1+NS
        for pp in range(2):
            a(f's_waitcnt lgkmcnt({1-pp})')
            for j in range(4):
                R=48+4*pp+j; T=56+2*j
                a(f'v_lshlrev_b32 v{T}, 16, v{R}\nv_and_b32 v{T+1}, 0xffff0000, v{R}')
            for j in range(4):
                T=56+2*j
                a(f'v_pk_add_f32 v[{32+2*j}:{33+2*j}], v[{32+2*j}:{33+2*j}], v[{T}:{T+1}]')
                a(f'v_pk_fma_f32 v[{40+2*j}:{41+2*j}], v[{T}:{T+1}], v[{T}:{T+1}], v[{40+2*j}:{41+2*j}]')
    a(f'''s_lshl_b32 s19, s18, 11
    s_add_u32 s19, s19, {PST}
    v_lshlrev_b32 v5, 5, v1
    v_add_u32 v5, s19, v5
    ds_write_b128 v5, v[32:35]
    ds_write_b128 v5, v[36:39] offset:16
    ds_write_b128 v5, v[40:43] offset:8192
    ds_write_b128 v5, v[44:47] offset:8208
    s_lshl_b32 s19, s18, 8
    s_add_u32 s19, s19, {PST}
    v_lshl_add_u32 v5, v1, 2, s19
    s_waitcnt lgkmcnt(0)
    s_barrier
    s_cmp_ge_u32 s18, 2
    s_cbranch_scc1 L_k2_lb''')
    for i in range(32): a(f'ds_read_b32 v{32+i}, v5 offset:{512*i}')
    a(f'''s_lshl_b32 s19, s18, 10
    s_add_u32 s19, s19, {FST}
    v_lshl_add_u32 v5, v1, 4, s19
    s_mov_b32 s32, 0x3acccccd
    s_waitcnt lgkmcnt(0)''')
    for st in (8,4,2,1):
        for i in range(st): a(f'v_add_f32 v{32+i}, v{32+i}, v{32+st+i}\nv_add_f32 v{48+i}, v{48+i}, v{48+st+i}')
    a('''v_mul_f32 v32, s32, v32
    v_mul_f32 v48, s32, v48
    v_fma_f32 v48, -v32, v32, v48
    v_max_f32 v48, 0, v48
    v_cvt_pk_bf16_f32 v33, v32, v48
    v_lshlrev_b32 v32, 16, v33
    v_and_b32 v48, 0xffff0000, v33
    v_add_f32 v48, 0x3727c5ac, v48
    v_cvt_pk_bf16_f32 v33, v48, v48
    v_and_b32 v48, 0xffff0000, v33
    v_sqrt_f32 v48, v48
    v_xor_b32 v32, 0x80000000, v32
    v_cvt_pk_bf16_f32 v33, v48, v48
    v_and_b32 v48, 0xffff0000, v33
    v_rcp_f32 v33, v48
    v_mul_f32 v34, v48, v48
    v_mov_b32 v35, 0
    ds_write_b128 v5, v[32:35]
    s_waitcnt lgkmcnt(0)''')
    a.lab('L_k2_lb'); a('s_barrier')
    a.lab('L_k2_end'); a('s_endpgm')
    return desc('k2_kernel',232,64)
```

```python
from common import *
N3=7; RES=4*N3*5120; K3LDS=RES+4*3072
def gen_k3(a):
    a.head('k3_kernel')
    a(f'''s_cmp_ge_u32 s2, 256
    s_cbranch_scc1 L_k3_end
    s_load_dwordx4 s[8:11], s[0:1], 72
    s_load_dwordx2 s[12:13], s[0:1], 96
    s_and_b32 s14, s2, 7
    s_lshr_b32 s15, s2, 3
    s_and_b32 s16, s14, 3
    s_lshl_b32 s16, s16, 3
    s_and_b32 s17, s15, 7
    s_add_u32 s16, s16, s17
    s_lshr_b32 s17, s14, 2
    s_lshl_b32 s17, s17, 2
    s_lshr_b32 s15, s15, 3
    s_add_u32 s17, s17, s15
    v_lshrrev_b32 v2, 6, v0
    v_and_b32 v1, 63, v0
    v_lshlrev_b32 v3, 4, v1
    v_readfirstlane_b32 s18, v2''')
    for p in range(5):
        a(f'''v_add_u32 v5, {64*p}, v1
        v_mul_u32_u24 v6, 52429, v5
        v_lshrrev_b32 v6, 19, v6
        v_mul_u32_u24 v7, 10, v6
        v_sub_u32 v5, v5, v7
        v_mul_u32_u24 v6, 1280, v6
        v_lshl_add_u32 v{10+p}, v5, 4, v6''')
    a(f'''s_mul_i32 s19, s18, {N3*5120}
    s_mul_i32 s24, s18, {384*1280}
    s_mul_i32 s25, s17, 160
    s_add_u32 s24, s24, s25
    s_lshl_b32 s26, s16, 2
    s_mul_i32 s27, s18, 12''')
    for jj in range(4):
        a(f'''s_add_u32 s{36+jj}, s18, {jj}
        s_and_b32 s{36+jj}, s{36+jj}, 3
        s_add_u32 s{32+jj}, s{36+jj}, s26
        s_mul_i32 s{32+jj}, s{32+jj}, 48
        s_add_u32 s{32+jj}, s{32+jj}, s27
        s_lshl_b32 s{32+jj}, s{32+jj}, 10
        s_add_u32 s{32+jj}, s{32+jj}, {HH}''')
    a('s_waitcnt lgkmcnt(0)')
    a.srd(20,8,0,1966080); a.srd(28,12,0,0x1000000); a.srd(40,10,0,2621440)
    Q=[]
    def wait(tag):
        i=max(k for k,t in enumerate(Q) if t==tag); a(f's_waitcnt vmcnt({len(Q)-1-i})')
    def issue(s):
        for p in range(5):
            a(f's_add_u32 m0, s19, {(s%N3)*5120+1024*p}\ns_nop 0\nbuffer_load_dwordx4 v{10+p}, s[20:23], s24 offen lds'); Q.append(s)
        a(f's_add_u32 s24, s24, {32*1280}')
        for jj in range(4):
            R=140+16*(s%N3)+4*jj
            a(f'buffer_load_dwordx4 v[{R}:{R+3}], v{3+(s>>2)}, s[28:31], s{32+jj} offen offset:{(s&3)*1024}'); Q.append(s)
    a('v_add_u32 v4, 4096, v3\nv_add_u32 v5, 8192, v3')
    for s in range(N3): issue(s)
    a(f'''v_lshrrev_b32 v7, 2, v1
    v_and_b32 v8, 3, v1
    v_lshlrev_b32 v8, 3, v8
    v_mul_u32_u24 v6, 160, v7
    v_add3_u32 v6, v6, v8, s19
    v_lshl_add_u32 v8, v7, 5, v8
    s_mul_i32 s44, s18, 3072
    s_add_u32 s44, s44, {RES}
    v_add_u32 v8, s44, v8
    v_lshrrev_b32 v7, 1, v1
    v_lshlrev_b32 v7, 12, v7
    v_and_b32 v9, 1, v1
    v_lshl_add_u32 v7, v9, 4, v7
    s_mul_i32 s45, s17, {80*4096}
    s_lshl_b32 s46, s16, 7
    s_add_u32 s45, s45, s46
    s_lshl_b32 s46, s18, 5
    s_add_u32 s45, s45, s46
    s_add_u32 s45, s45, {HT}''')
    def reads(s):
        fb=100+20*(s&1)
        return [f'ds_read_b64_tr_b16 v[{fb+4*i+2*h}:{fb+4*i+2*h+1}], v6 offset:{(s%N3)*5120+32*i+2560*h}' for i in range(5) for h in range(2)]
    wait(0)
    for x in reads(0): a(x)
    for s in range(12):
        R=[]
        if s<11: wait(s+1); R=reads(s+1); a(R.pop(0)); a(R.pop(0)); a('s_waitcnt lgkmcnt(2)')
        else: a('s_waitcnt lgkmcnt(0)')
        fb=100+20*(s&1)
        for i in range(5):
            for jj in range(4):
                C=20+(jj*5+i)*4; A=fb+4*i; B=140+16*(s%N3)+4*jj
                src='0' if s==0 else f'v[{C}:{C+3}]'
                a(f'v_mfma_f32_16x16x32_bf16 v[{C}:{C+3}], v[{A}:{A+3}], v[{B}:{B+3}], {src}')
                if R: a(R.pop(0))
        if s+N3<12: issue(s+N3)
        if s+N3==12:
            for p in range(3):
                a(f's_add_u32 m0, s44, {1024*p}\ns_nop 0\nbuffer_load_dwordx4 v7, s[28:31], s45 offen lds\ns_add_u32 s45, s45, {32*4096}'); Q.append(99)
    for jj in range(1,4):
        a(f's_mul_i32 s46, s{36+jj}, 15360\nv_add_u32 v{9+jj}, s46, v3')
    a(f'''s_mul_i32 s46, s18, 15360
    v_add_u32 v9, s46, v3
    v_and_b32 v4, 15, v1
    s_lshl_b32 s46, s16, 6
    s_lshl_b32 s47, s18, 4
    s_add_u32 s46, s46, s47
    v_add_u32 v4, s46, v4
    v_mul_u32_u24 v4, 1280, v4
    v_lshrrev_b32 v5, 4, v1
    v_lshl_add_u32 v4, v5, 3, v4
    s_barrier''')
    for jj in range(1,4):
        for i in range(5):
            C=20+(jj*5+i)*4
            a(f'ds_write_b128 v{9+jj}, v[{C}:{C+3}] offset:{((jj-1)*5+i)*1024}')
    a('s_waitcnt vmcnt(0)')
    for i in range(5): a(f'ds_read_b64_tr_b16 v[{100+2*i}:{101+2*i}], v8 offset:{512*i}')
    a('s_waitcnt lgkmcnt(0)\ns_barrier')
    for i in range(5):
        for j in range(3):
            R=140+(i*3+j)*4
            a(f'ds_read_b128 v[{R}:{R+3}], v9 offset:{(j*5+i)*1024}')
    for i in range(5):
        C=20+4*i; R=140+12*i; H=112+4*i
        a(f's_waitcnt lgkmcnt({12-3*i})')
        for h in range(2):
            a(f'v_lshlrev_b32 v{H+2*h}, 16, v{100+2*i+h}\nv_and_b32 v{H+2*h+1}, 0xffff0000, v{100+2*i+h}')
        for h in (0,2):
            a(f'v_pk_add_f32 v[{C+h}:{C+h+1}], v[{C+h}:{C+h+1}], v[{R+h}:{R+h+1}]')
            a(f'v_pk_add_f32 v[{R+4+h}:{R+5+h}], v[{R+4+h}:{R+5+h}], v[{R+8+h}:{R+9+h}]')
        for h in (0,2):
            a(f'v_pk_add_f32 v[{C+h}:{C+h+1}], v[{C+h}:{C+h+1}], v[{R+4+h}:{R+5+h}]')
        for h in (0,2):
            a(f'v_cvt_pk_bf16_f32 v{R+h}, v{C+h}, v{C+h+1}')
        for h in (0,2):
            a(f'v_lshlrev_b32 v{C+h}, 16, v{R+h}\nv_and_b32 v{C+h+1}, 0xffff0000, v{R+h}')
        for h in (0,2):
            a(f'v_pk_add_f32 v[{C+h}:{C+h+1}], v[{C+h}:{C+h+1}], v[{H+h}:{H+h+1}]')
        a(f'v_cvt_pk_bf16_f32 v{R+4}, v{C}, v{C+1}\nv_cvt_pk_bf16_f32 v{R+5}, v{C+2}, v{C+3}')
        a(f'buffer_store_dwordx2 v[{R+4}:{R+5}], v4, s[40:43], s25 offen offset:{32*i}')
    a.lab('L_k3_end'); a('s_endpgm')
    return desc('k3_kernel',252,64)
```

```python
import sys
from common import *
import k0,k1,k2,k3
a=Asm()
d=[k0.gen_k0(a),k1.gen_k1(a),k2.gen_k2(a),k3.gen_k3(a)]
hdr=f'''; generated by gen/gen.py
; @launch kernel=k0_kernel grid=({k0.K0G},1,1) block=(256,1,1) lds=33792
; @launch kernel=k1_kernel grid=({k1.NCS+640},1,1) block=(256,1,1) lds={k1.K1LDS}
; @launch kernel=k2_kernel grid=(256,1,1) block=(512,1,1) lds={k2.K2LDS}
; @launch kernel=k3_kernel grid=(256,1,1) block=(512,1,1) lds={k3.K3LDS}
.amdgcn_target "amdgcn-amd-amdhsa--gfx950"
.text
'''
out=sys.argv[1] if len(sys.argv)>1 else 'sequential_preLN__ssm_conv_h3__glu_gated_geglu__prompt.s'
open(out,'w').write(hdr+a.text()+'.section .rodata,"a"\n'+''.join(d))
```

```python
KVR=0x000000; XT=0x280000; HT=0x500000; ST1=0x780000; CS=0x782000; HH=0x800000
import os
DBG=int(os.environ.get('DBG','-1'))
EXP=int(os.environ.get('EXP','0'))
class Asm:
    def stamp(s,i):
        if DBG>=0: s(f's_memtime s[{64+2*i}:{65+2*i}]')
    def dump(s,n,wreg,wv,off):
        if DBG<0: return
        L=s.uid('dbg')
        s(f's_cmp_lg_u32 s2, {DBG}\ns_cbranch_scc1 {L}\ns_cmp_lg_u32 s{wreg}, {wv}\ns_cbranch_scc1 {L}\ns_load_dwordx2 s[96:97], s[0:1], 88\ns_mov_b64 exec, 1\nv_mov_b32 v0, 0\ns_waitcnt lgkmcnt(0)')
        for i in range(n): s(f's_sub_u32 s98, s{64+2*i}, s64\nv_mov_b32 v1, s98\nglobal_store_dword v0, v1, s[96:97] offset:{4*(off+i)}')
        s.lab(L)
    def __init__(s): s.l=[]; s.n=0
    def __call__(s, t):
        for x in t.strip('\n').split('\n'): s.l.append('    '+x.strip())
    def lab(s, n): s.l.append(n+':')
    def uid(s, p): s.n+=1; return f'L_{p}_{s.n}'
    def srd(s, d, base, off, nrec, offs=None):
        if offs is not None:
            s(f's_add_u32 s{d}, s{base}, s{offs}\ns_addc_u32 s{d+1}, s{base+1}, 0')
            if off: s(f's_add_u32 s{d}, s{d}, {off}\ns_addc_u32 s{d+1}, s{d+1}, 0')
        elif off: s(f's_add_u32 s{d}, s{base}, {off}\ns_addc_u32 s{d+1}, s{base+1}, 0')
        else: s(f's_mov_b32 s{d}, s{base}\ns_mov_b32 s{d+1}, s{base+1}')
        s(f's_mov_b32 s{d+2}, {nrec}\ns_mov_b32 s{d+3}, 0x00020000')
    def head(s, name):
        s.l += ['.p2align 8', f'.globl {name}', f'.type {name},@function', f'{name}:']
    def text(s): return '\n'.join(s.l)+'\n'
def desc(name, vgpr, sgpr=96, agpr=0):
    acc=(vgpr+3)//4*4
    if DBG>=0: sgpr=100
    return f'''.p2align 6
.amdhsa_kernel {name}
  .amdhsa_next_free_vgpr {acc+agpr if agpr else vgpr}
  .amdhsa_next_free_sgpr {sgpr}
  .amdhsa_accum_offset {acc}
  .amdhsa_group_segment_fixed_size 0
  .amdhsa_kernarg_size 104
  .amdhsa_user_sgpr_count 2
  .amdhsa_user_sgpr_kernarg_segment_ptr 1
  .amdhsa_system_sgpr_workgroup_id_x 1
.end_amdhsa_kernel
'''
def wave_reduce(a, regs):
    for m in ['quad_perm:[1,0,3,2] row_mask:0xf bank_mask:0xf','quad_perm:[2,3,0,1] row_mask:0xf bank_mask:0xf',
              'row_half_mirror row_mask:0xf bank_mask:0xf','row_mirror row_mask:0xf bank_mask:0xf',
              'row_bcast:15 row_mask:0xa bank_mask:0xf','row_bcast:31 row_mask:0xc bank_mask:0xf']:
        a('s_nop 1')
        for r in regs: a(f'v_add_f32_dpp v{r}, v{r}, v{r} {m}')
    a('s_nop 1')
WDP=0x1000000; WGP=0x1200000
def pack(a, srd_src, srd_ws, NO, magic, sh, rowb, nb, nks, fr, tid_s, dstbase_s):
    m2={5:13108,6:10923}[nb]
    a(f'''v_add_u32 v1, s{tid_s}, v0
    v_mul_u32_u24 v2, {magic}, v1
    v_lshrrev_b32 v2, {sh}, v2
    v_mul_u32_u24 v3, {NO}, v2
    v_sub_u32 v1, v1, v3
    v_lshrrev_b32 v3, 2, v2
    v_and_b32 v2, 3, v2
    v_lshlrev_b32 v4, 3, v3
    v_add_u32 v4, v4, v2
    v_mul_u32_u24 v4, {4*rowb}, v4
    v_lshl_add_u32 v4, v1, 4, v4
    s_movk_i32 s60, {rowb}
    s_movk_i32 s61, {2*rowb}
    s_movk_i32 s62, {3*rowb}
    v_add_u32 v5, {16*rowb}, v4''')
    for e in range(8):
        so=['0','s60','s61','s62'][e&3]
        a(f'buffer_load_dwordx4 v[{10+4*e}:{13+4*e}], v{4+(e>>2)}, s[{srd_src}:{srd_src+3}], {so} offen')
    a(f'''v_lshrrev_b32 v6, 1, v1
    v_mul_u32_u24 v7, {m2}, v6
    v_lshrrev_b32 v7, 16, v7
    v_mul_u32_u24 v8, {nb}, v7
    v_sub_u32 v6, v6, v8
    v_mad_u32_u24 v7, v7, {nks}, v3
    v_mad_u32_u24 v7, v7, {fr}, v6
    v_lshlrev_b32 v7, 10, v7
    v_lshl_add_u32 v7, v2, 8, v7
    v_and_b32 v1, 1, v1
    v_lshl_add_u32 v7, v1, 7, v7
    s_mov_b32 s60, 0x05040100
    s_mov_b32 s61, 0x07060302
    s_waitcnt vmcnt(0)''')
    for j in range(8):
        for e in range(4):
            a(f'v_perm_b32 v{42+4*j+e}, v{10+4*(2*e+1)+(j>>1)}, v{10+4*(2*e)+(j>>1)}, s{60+(j&1)}')
        a(f'buffer_store_dwordx4 v[{42+4*j}:{45+4*j}], v7, s[{srd_ws}:{srd_ws+3}], s{dstbase_s} offen offset:{16*j}')
    a('s_endpgm')
```

```python
from common import *
K0G=160+128+120
def gen_k0(a):
    a.head('k0_kernel'); a.stamp(0)
    a(f'''s_cmp_ge_u32 s2, {K0G}
    s_cbranch_scc1 L_k0_end
    s_load_dwordx4 s[4:7], s[0:1], 0
    s_load_dwordx4 s[8:11], s[0:1], 16
    s_load_dwordx2 s[12:13], s[0:1], 96
    s_load_dwordx4 s[48:51], s[0:1], 56
    s_cmp_ge_u32 s2, 160
    s_cbranch_scc1 L_k0_o
    s_and_b32 s14, s2, 31
    s_lshr_b32 s15, s2, 5
    v_and_b32 v1, 7, v0
    v_lshrrev_b32 v2, 3, v0
    s_lshl_b32 s16, s14, 6
    v_lshl_add_u32 v3, v1, 3, s16
    s_lshl_b32 s17, s15, 7
    v_lshl_add_u32 v4, v2, 2, s17
    v_mul_u32_u24 v5, 1280, v3
    v_lshl_add_u32 v5, v4, 1, v5
    v_subrev_u32 v6, 3840, v5
    v_lshlrev_b32 v7, 3, v4
    s_movk_i32 s40, 3840
    s_movk_i32 s41, 7680
    s_mov_b32 s19, 0
    s_waitcnt lgkmcnt(0)''')
    a.srd(20,4,0,2621440); a.srd(24,6,0,2621440); a.srd(28,8,0,2621440); a.srd(32,10,0,5120); a.srd(36,12,0,0x800000)
    def rowld(dst, srd, j):
        so=['0','s40','s41'][j//3]; a(f'buffer_load_dwordx2 v[{dst}:{dst+1}], v5, s[{srd}:{srd+3}], {so} offen offset:{(j%3)*1280}')
    a('buffer_load_dwordx4 v[8:11], v7, s[32:35], 0 offen\nbuffer_load_dwordx4 v[12:15], v7, s[32:35], 0 offen offset:16')
    for j in range(3): a(f'buffer_load_dwordx2 v[{16+2*j}:{17+2*j}], v6, s[24:27], 0 offen offset:{j*1280}')
    for j in range(8): rowld(22+2*j,24,j)
    for j in range(8): rowld(38+2*j,28,j)
    for j in range(8): rowld(54+2*j,20,j)
    a(f'''v_lshlrev_b32 v7, 12, v4
    v_lshlrev_b32 v1, 1, v3
    v_sub_u32 v2, v7, v1
    v_add_u32 v2, 4080, v2
    v_add_u32 v1, v7, v1
    v_add_u32 v1, {XT}, v1
    s_mov_b32 s44, 0x05040100
    s_mov_b32 s45, 0x07060302
    s_movk_i32 s46, 4096
    s_movk_i32 s47, 8192
    s_movk_i32 s52, 12288
    s_waitcnt vmcnt(16)''')
    a.stamp(1)
    so=['0','s46','s47','s52']
    for p in range(2):
        for tap in range(4):
            for h in range(2):
                src=8+2*(2*p+h)+(tap>>1); d=70+8*p+2*tap+h
                a(f'v_and_b32 v{d}, 0xffff0000, v{src}' if tap&1 else f'v_lshlrev_b32 v{d}, 16, v{src}')
    for p in range(2):
        for j in range(11): a(f'v_lshlrev_b32 v{88+2*j}, 16, v{16+2*j+p}\nv_and_b32 v{89+2*j}, 0xffff0000, v{16+2*j+p}')
        W=lambda t: f'v[{70+8*p+2*t}:{71+8*p+2*t}]'
        K=lambda j: f'v[{88+2*j}:{89+2*j}]'
        D=lambda j: f'v[{110+2*j}:{111+2*j}]'
        for j in range(8): a(f'v_pk_mul_f32 {D(j)}, {K(j)}, {W(3)}')
        for tap in (2,1,0):
            for j in range(8): a(f'v_pk_fma_f32 {D(j)}, {K(j+3-tap)}, {W(tap)}, {D(j)}')
        if p==0: a('s_waitcnt vmcnt(8)')
        for j in range(8): a(f'v_lshlrev_b32 v{88+2*j}, 16, v{38+2*j+p}\nv_and_b32 v{89+2*j}, 0xffff0000, v{38+2*j+p}')
        for j in range(8): a(f'v_pk_mul_f32 {D(j)}, {D(j)}, {K(j)}')
        for h in range(2):
            O=126+8*p+4*h
            for i in range(4): a(f'v_cvt_pk_bf16_f32 v{O+i}, v{110+2*(7-2*i)+h}, v{110+2*(6-2*i)+h}')
            a(f'buffer_store_dwordx4 v[{O}:{O+3}], v2, s[36:39], {so[2*p+h]} offen')
    a('s_waitcnt vmcnt(4)')
    for c in range(4):
        O=88+4*c
        for i in range(4): a(f'v_perm_b32 v{O+i}, v{54+2*(2*i+1)+(c>>1)}, v{54+2*(2*i)+(c>>1)}, s{44+(c&1)}')
        a(f'buffer_store_dwordx4 v[{O}:{O+3}], v1, s[36:39], {so[c]} offen')
    a.stamp(2); a('s_waitcnt vmcnt(0)') if DBG>=0 else 0; a.stamp(3); a.dump(4,19,0,0)
    a('s_endpgm')
    a.lab('L_k0_o')
    a('''s_cmp_ge_u32 s2, 288
    s_cbranch_scc1 L_k0_p
    v_lshrrev_b32 v2, 6, v0
    v_and_b32 v1, 63, v0
    s_sub_u32 s14, s2, 160
    v_readfirstlane_b32 s15, v2
    s_lshl_b32 s14, s14, 2
    s_add_u32 s14, s14, s15
    s_mul_i32 s15, s14, 5120
    v_lshlrev_b32 v3, 4, v1
    v_lshlrev_b32 v4, 2, v1
    s_add_u32 s16, s15, 2560
    s_waitcnt lgkmcnt(0)''')
    a.srd(20,4,0,2621440); a.srd(36,12,0,0x800000)
    for r in range(4):
        a(f'buffer_load_dwordx4 v[{10+6*r}:{13+6*r}], v3, s[20:23], s{15+(r>>1)} offen offset:{(r&1)*1280}')
        a(f'buffer_load_dword v{14+6*r}, v4, s[20:23], s{15+(r>>1)} offen offset:{(r&1)*1280+1024}')
    a('s_mov_b32 s17, 0x3f803f80\ns_mov_b32 s49, 0x3acccccd')
    for r in range(8): a(f'v_mov_b32 v{40+r}, 0')
    for r in range(4):
        a(f's_waitcnt vmcnt({6-2*r})')
        for i in range(5):
            a(f'v_dot2_f32_bf16 v{40+r}, v{10+6*r+i}, s17, v{40+r}\nv_dot2_f32_bf16 v{44+r}, v{10+6*r+i}, v{10+6*r+i}, v{44+r}')
    a('s_nop 2')
    wave_reduce(a,list(range(40,48)))
    for r in range(4):
        a(f'''v_mul_f32 v{40+r}, s49, v{40+r}
        v_mul_f32 v{44+r}, s49, v{44+r}
        v_fma_f32 v{44+r}, -v{40+r}, v{40+r}, v{44+r}
        v_max_f32 v{44+r}, 0, v{44+r}
        v_cvt_pk_bf16_f32 v{44+r}, v{44+r}, v{44+r}
        v_and_b32 v{44+r}, 0xffff0000, v{44+r}
        v_add_f32 v{44+r}, 0x3727c5ac, v{44+r}
        v_cvt_pk_bf16_f32 v{44+r}, v{44+r}, v{44+r}
        v_and_b32 v{44+r}, 0xffff0000, v{44+r}
        v_sqrt_f32 v{44+r}, v{44+r}
        s_nop 0
        v_cvt_pk_bf16_f32 v{48+r}, v{40+r}, v{44+r}''')
    a(f'''s_lshl_b32 s14, s14, 4
    s_add_u32 s14, s14, {ST1}
    v_mov_b32 v3, 0
    s_mov_b32 exec_lo, 0
    s_mov_b32 exec_hi, 0x80000000
    buffer_store_dwordx4 v[48:51], v3, s[36:39], s14 offen
    s_endpgm''')
    a.lab('L_k0_p')
    if EXP==2: a('s_endpgm')
    a(f'''s_sub_u32 s14, s2, 288
    s_cmp_ge_u32 s14, 60
    s_cselect_b32 s15, 60, 0
    s_sub_u32 s15, s14, s15
    s_lshl_b32 s15, s15, 8
    s_waitcnt lgkmcnt(0)
    s_cmp_ge_u32 s14, 60
    s_cselect_b32 s48, s50, s48
    s_cselect_b32 s49, s51, s49
    s_cselect_b32 s16, 6144, 0''')
    a.srd(20,48,0,1966080); a.srd(36,12,WGP,0x400000)
    pack(a,20,36,192,21846,22,3072,6,20,12,15,16)
    a.lab('L_k0_end'); a('s_endpgm')
    return desc('k0_kernel',144,64)
```

```python
from common import *
from k2 import kq_reduce
CSZ=4128
NCS=108
BO=8*CSZ; K1LDS=BO+5120
def rnd(a, x, y, t):
    a(f'v_cvt_pk_bf16_f32 v{t}, v{x}, v{y}\nv_lshlrev_b32 v{x}, 16, v{t}\nv_and_b32 v{y}, 0xffff0000, v{t}')
def gen_k1(a):
    a.head('k1_kernel'); a.stamp(0)
    a(f'''s_cmp_ge_u32 s2, {NCS+640}
    s_cbranch_scc1 L_k1_end
    s_load_dwordx4 s[4:7], s[0:1], 32
    s_load_dwordx2 s[8:9], s[0:1], 72
    s_load_dwordx2 s[12:13], s[0:1], 96
    v_and_b32 v1, 63, v0
    v_lshrrev_b32 v2, 6, v0
    s_cmp_lt_u32 s2, {NCS}
    s_cbranch_scc1 L_k1_cs
    s_sub_u32 s14, s2, {NCS}
    s_lshl_b32 s15, s14, 12
    s_lshl_b32 s16, s14, 1
    s_and_b32 s17, s16, 2
    s_and_b32 s16, s16, -4
    v_readfirstlane_b32 s18, v2
    v_lshlrev_b32 v3, 4, v0
    v_subrev_u32 v4, 32, v3
    v_subrev_u32 v5, 16, v3
    v_and_b32 v6, 15, v0
    v_bfe_u32 v7, v0, 4, 2
    s_waitcnt lgkmcnt(0)
    s_load_dword s19, s[6:7], s16''')
    a.srd(20,4,0,4096,15); a.srd(24,12,KVR,4096,15); a.srd(28,12,0,0x800000)
    a(f'''buffer_load_dwordx4 v[10:13], v4, s[20:23], 0 offen
    buffer_load_dwordx4 v[14:17], v5, s[20:23], 0 offen
    v_lshlrev_b32 v8, 4, v7
    v_lshl_add_u32 v8, v2, 7, v8
    v_lshlrev_b32 v9, 5, v6
    v_sub_u32 v8, v8, v9
    v_add_u32 v8, {480+BO}, v8
    s_lshl_b32 s35, s18, 10
    s_add_u32 m0, s35, {BO}
    v_add_u32 v9, 4096, v3
    buffer_load_dwordx4 v3, s[24:27], 0 offen lds
    s_mov_b32 m0, {BO+4096}
    s_nop 0
    buffer_load_dwordx4 v9, s[24:27], 0 offen lds''')
    a(f'''v_lshlrev_b32 v9, 4, v6
    v_lshl_add_u32 v9, v7, 2, v9
    v_lshl_add_u32 v9, v2, 9, v9
    v_lshlrev_b32 v154, 1, v9
    v_sub_u32 v155, 3576, v154
    v_lshlrev_b32 v156, 2, v9
    s_add_u32 s32, s15, {XT}
    s_add_u32 s33, s15, {HT}
    s_mov_b32 s34, {ST1}
    buffer_load_dwordx2 v[138:139], v154, s[28:31], s32 offen
    buffer_load_dwordx2 v[140:141], v154, s[28:31], s32 offen offset:512
    buffer_load_dwordx2 v[142:143], v155, s[24:27], 0 offen offset:512
    buffer_load_dwordx2 v[144:145], v155, s[24:27], 0 offen
    buffer_load_dwordx4 v[146:149], v156, s[28:31], s34 offen
    buffer_load_dwordx4 v[150:153], v156, s[28:31], s34 offen offset:1024''')
    def build(off):
        for j in range(6): a(f'v_mov_b32 v{18+j}, v{11+j}')
        for j in range(6): a(f'v_alignbit_b32 v{26+j}, v{11+j}, v{10+j}, 16')
        for j in range(6): a(f'v_alignbit_b32 v{32+j}, v{12+j}, v{11+j}, 16')
        for c,R in enumerate([10,26,18,32,12,28,20,34]):
            a(f'ds_write_b128 v3, v[{R}:{R+3}] offset:{c*CSZ+off}')
    a.stamp(1); a('s_waitcnt vmcnt(8)'); a.stamp(2)
    build(0)
    a('''s_cmp_lg_u32 s18, 0
    s_cbranch_scc1 L_k1_nx
    s_mov_b64 exec, 3
    s_nop 2
    buffer_load_dwordx4 v[10:13], v3, s[20:23], 0 offen offset:4064
    buffer_load_dwordx4 v[14:17], v3, s[20:23], 0 offen offset:4080
    s_waitcnt vmcnt(0)''')
    build(4096)
    a('s_mov_b64 exec, -1')
    a.lab('L_k1_nx')
    a(f'''v_add_u32 v4, 1, v6
    v_and_b32 v5, 7, v4
    v_lshrrev_b32 v4, 3, v4
    v_add_u32 v4, v4, v7
    v_lshlrev_b32 v4, 4, v4
    v_mov_b32 v1, {CSZ}
    v_mad_u32_u24 v4, v5, v1, v4
    v_lshl_add_u32 v4, v2, 7, v4
    s_waitcnt lgkmcnt(0) vmcnt(6)
    s_barrier''')
    a.stamp(3)
    def rd(bt):
        r=bt>>1
        for i in range(4):
            av=4*(bt&1)+i; R=10+16*(bt&1)+4*i
            a(f'ds_read_b128 v[{R}:{R+3}], v4 offset:{64*r+512*av}')
    def rdb(r):
        for b in range(8):
            R=74+32*r+4*b
            a(f'ds_read_b128 v[{R}:{R+3}], v8 offset:{3584-512*b+64*r}')
    rd(0); rdb(0)
    seen=set()
    for bt in range(4):
        r=bt>>1
        if bt==0: a('s_waitcnt lgkmcnt(0)'); rd(1); rdb(1)
        elif bt==1: a('s_waitcnt lgkmcnt(8)'); rd(2)
        elif bt==2: a('s_waitcnt lgkmcnt(0)'); rd(3)
        else: a('s_waitcnt lgkmcnt(0)')
        a.stamp(4+bt)
        for i in range(4):
            av=4*(bt&1)+i; A=10+16*(bt&1)+4*i
            for b in range(8-av):
                I=av+b; C=42+4*I; B=74+32*r+4*b
                src=f'v[{C}:{C+3}]' if I in seen else '0'; seen.add(I)
                a(f'v_mfma_f32_16x16x32_bf16 v[{C}:{C+3}], v[{A}:{A+3}], v[{B}:{B+3}], {src}')
    a('''v_and_b32 v1, 63, v0
    v_lshlrev_b32 v1, 4, v1
    v_lshl_add_u32 v5, v2, 13, v1
    v_lshl_add_u32 v1, v2, 11, v1
    s_nop 4
    s_barrier''')
    for I in range(8): a(f'ds_write_b128 v5, v[{42+4*I}:{45+4*I}] offset:{1024*I}')
    a.stamp(8); a('s_waitcnt lgkmcnt(0)\ns_barrier'); a.stamp(9)
    for I in range(2):
        for w in range(4): a(f'ds_read_b128 v[{74+16*I+4*w}:{77+16*I+4*w}], v1 offset:{8192*w+1024*I}')
    a('''s_lshl_b32 s17, s17, 3
    s_lshr_b32 s19, s19, s17
    s_lshl_b32 s19, s19, 16
    s_waitcnt vmcnt(0)''')
    for I in range(2):
        for h in range(2):
            a(f'v_lshlrev_b32 v{10+4*I+2*h}, 16, v{138+2*I+h}\nv_and_b32 v{11+4*I+2*h}, 0xffff0000, v{138+2*I+h}')
            a(f'v_lshlrev_b32 v{18+4*I+3-2*h}, 16, v{142+2*I+h}\nv_and_b32 v{18+4*I+2-2*h}, 0xffff0000, v{142+2*I+h}')
    for e in range(8):
        a(f'v_lshlrev_b32 v{26+e}, 16, v{146+e}\nv_and_b32 v{34+e}, 0xffff0000, v{146+e}')
    for e in range(8): a(f'v_rcp_f32 v{34+e}, v{34+e}')
    for e in range(8): a(f'v_sub_f32 v{26+e}, v{10+e}, v{26+e}\nv_mul_f32 v{18+e}, s19, v{18+e}')
    for e in range(0,8,2): rnd(a,26+e,27+e,2); rnd(a,18+e,19+e,3)
    for e in range(8): a(f'v_mul_f32 v{26+e}, v{26+e}, v{34+e}')
    for e in range(0,8,2): rnd(a,26+e,27+e,2)
    a('s_waitcnt lgkmcnt(0)')
    for I in range(2):
        b=74+16*I
        for j in range(0,4,2):
            a(f'v_pk_add_f32 v[{b+j}:{b+j+1}], v[{b+j}:{b+j+1}], v[{b+4+j}:{b+5+j}]')
            a(f'v_pk_add_f32 v[{b+8+j}:{b+9+j}], v[{b+8+j}:{b+9+j}], v[{b+12+j}:{b+13+j}]')
        for j in range(0,4,2):
            a(f'v_pk_add_f32 v[{b+j}:{b+j+1}], v[{b+j}:{b+j+1}], v[{b+8+j}:{b+9+j}]')
    Y=lambda e: 74+16*(e>>2)+(e&3)
    for e in range(0,8,2): rnd(a,Y(e),Y(e+1),2+(e>>1&1))
    for e in range(8): a(f'v_add_f32 v{18+e}, v{18+e}, v{Y(e)}')
    for e in range(0,8,2): rnd(a,18+e,19+e,2+(e>>1&1))
    for e in range(8): a(f'v_mul_f32 v{18+e}, v{18+e}, v{26+e}')
    for e in range(0,8,2): rnd(a,18+e,19+e,2+(e>>1&1))
    for e in range(8): a(f'v_add_f32 v{18+e}, v{18+e}, v{10+e}')
    for e in range(0,8,2): a(f'v_cvt_pk_bf16_f32 v{26+e//2}, v{18+e}, v{19+e}')
    a('''buffer_store_dwordx2 v[26:27], v154, s[28:31], s33 offen
    buffer_store_dwordx2 v[28:29], v154, s[28:31], s33 offen offset:512''')
    a.stamp(10); a('s_waitcnt vmcnt(0)') if DBG>=0 else 0; a.stamp(11); a.dump(12,18,1,0); a('s_endpgm')
    a.lab('L_k1_cs')
    a(f'''s_cmp_lt_u32 s2, 60
    s_cbranch_scc1 L_k1_pk
    v_readfirstlane_b32 s18, v2
    s_sub_u32 s14, s2, 60
    s_lshl_b32 s14, s14, 2
    s_add_u32 s14, s14, s18
    s_mul_i32 s15, s14, 43691
    s_lshr_b32 s15, s15, 19
    s_mul_i32 s16, s15, 12
    s_sub_u32 s16, s14, s16
    s_mul_i32 s17, s15, 240
    s_add_u32 s17, s17, s16
    s_lshl_b32 s17, s17, 10
    s_add_u32 s17, s17, {WGP}
    v_lshlrev_b32 v3, 4, v1
    s_mov_b32 s40, 0x3f803f80
    v_mov_b32 v4, 0
    s_waitcnt lgkmcnt(0)''')
    a.srd(28,12,0,0x1600000)
    for i in range(20): a(f'buffer_load_dwordx4 v[{8+4*i}:{11+4*i}], v3, s[28:31], s17 offen\ns_add_u32 s17, s17, 12288')
    a(f'''s_cmp_ge_u32 s16, 6
    s_cselect_b32 s19, {6144-384}, 0
    s_mul_i32 s15, s15, 384
    s_lshl_b32 s16, s16, 6
    s_add_u32 s15, s15, s16
    s_add_u32 s15, s15, s19
    s_add_u32 s15, s15, {CS}
    v_and_b32 v3, 15, v1
    v_lshlrev_b32 v3, 2, v3''')
    for i in range(20):
        a(f's_waitcnt vmcnt({19-i})')
        for e in range(4): a(f'v_dot2_f32_bf16 v4, v{8+4*i+e}, s40, v4')
    a('s_nop 2'); kq_reduce(a,[4],5)
    a('buffer_store_dword v4, v3, s[28:31], s15 offen\ns_endpgm')
    a.lab('L_k1_pk')
    a('s_lshl_b32 s15, s2, 8\ns_mov_b32 s16, 0\ns_waitcnt lgkmcnt(0)')
    a.srd(20,8,0,1966080); a.srd(36,12,WDP,0x200000)
    pack(a,20,36,80,52429,22,1280,5,48,5,15,16)
    a.lab('L_k1_end'); a('s_endpgm')
    return desc('k1_kernel',160,64)
```

```python
from common import *
NS=7; SL=20480; FST=NS*SL; K2LDS=FST+2048
def kq_reduce(a, regs, tmp):
    for op in ('v_permlane32_swap_b32','v_permlane16_swap_b32'):
        for i,r in enumerate(regs): a(f'v_mov_b32 v{tmp+i}, v{r}')
        a('s_nop 1')
        for i,r in enumerate(regs): a(f'{op} v{r}, v{tmp+i}')
        a('s_nop 1')
        for i,r in enumerate(regs): a(f'v_add_f32 v{r}, v{r}, v{tmp+i}')
def gen_k2(a):
    a.head('k2_kernel'); a.stamp(0)
    a(f'''s_cmp_ge_u32 s2, 256
    s_cbranch_scc1 L_k2_end
    s_load_dwordx2 s[12:13], s[0:1], 96
    s_and_b32 s14, s2, 7
    s_lshr_b32 s15, s2, 3
    s_and_b32 s16, s14, 1
    s_lshl_b32 s16, s16, 3
    s_and_b32 s17, s15, 7
    s_add_u32 s16, s16, s17
    s_lshr_b32 s17, s14, 1
    s_lshl_b32 s17, s17, 2
    s_lshr_b32 s15, s15, 3
    s_add_u32 s17, s17, s15
    v_lshrrev_b32 v2, 6, v0
    v_and_b32 v1, 63, v0
    s_nop 0
    v_readfirstlane_b32 s18, v2
    s_cmp_ge_u32 s18, 4
    s_cbranch_scc1 L_k2_ld''')
    a(f'''s_and_b32 s19, s18, 1
    s_lshr_b32 s20, s18, 1
    v_lshrrev_b32 v3, 2, v1
    v_and_b32 v4, 3, v1
    v_lshlrev_b32 v4, 3, v4
    v_lshl_add_u32 v5, v3, 8, v4
    v_and_b32 v6, 7, v3
    v_lshlrev_b32 v7, 4, v1
    s_lshl_b32 s21, s19, 2
    s_lshl_b32 s22, s20, 2
    s_add_u32 s23, s22, 1
    s_add_u32 s24, s20, 2
    s_lshl_b32 s25, s20, 1''')
    for jj in range(4):
        a(f'''s_add_u32 s{36+jj}, s25, {jj}
        s_and_b32 s{36+jj}, s{36+jj}, 3
        s_add_u32 s{36+jj}, s{36+jj}, s21
        v_xor_b32 v9, s{36+jj}, v6
        v_lshl_add_u32 v{10+jj}, v9, 5, v5
        v_add_u32 v{14+jj}, {3*SL}, v{10+jj}
        v_add_u32 v{18+jj}, {6*SL}, v{10+jj}''')
    for x,sr in ((0,22),(1,24)):
        a(f'''s_lshl_b32 s25, s{sr}, 10
        s_add_u32 s25, s25, 8192
        v_add_u32 v{22+x}, s25, v7
        v_add_u32 v{24+x}, {3*SL}, v{22+x}
        v_add_u32 v{26+x}, {6*SL}, v{22+x}''')
    a(f'''v_lshrrev_b32 v3, 4, v1
    v_lshlrev_b32 v3, 4, v3
    s_mul_i32 s25, s17, 384
    s_add_u32 s25, s25, {CS}
    s_mov_b32 s40, 0x3f803f80
    v_mov_b32 v28, 0
    v_mov_b32 v29, 0
    v_mov_b32 v30, 0
    v_mov_b32 v31, 0
    s_waitcnt lgkmcnt(0)''')
    a.srd(28,12,0,0x1000000)
    for ii in range(3):
        a(f'''s_lshl_b32 s26, s{22+ii}, 6
        s_add_u32 s26, s26, s25
        s_add_u32 s27, s26, 6144
        buffer_load_dwordx4 v[{32+8*ii}:{35+8*ii}], v3, s[28:31], s26 offen
        buffer_load_dwordx4 v[{36+8*ii}:{39+8*ii}], v3, s[28:31], s27 offen''')
    def reads(s):
        sl=s%NS; st=sl//3; o=(sl%3)*SL; fb=152+40*(s&1); L=[]
        for jj in range(4):
            for h in range(2):
                R=fb+4*jj+2*h
                L.append(f'ds_read_b64_tr_b16 v[{R}:{R+1}], v{10+4*st+jj} offset:{o+4096*h}')
        for ii in range(3):
            for gu in range(2):
                R=fb+16+12*gu+4*ii
                L.append(f'ds_read_b128 v[{R}:{R+3}], v{22+2*st+(ii>>1)} offset:{o+6144*gu+1024*(ii&1)}')
        return L
    def mfmas(s):
        fb=152+40*(s&1); L=[]
        for jj in range(4):
            for ii in range(3):
                for gu in range(2):
                    C=56+(jj*3+ii)*8+4*gu; A=fb+16+12*gu+4*ii; B=fb+4*jj
                    src='0' if s==0 else f'v[{C}:{C+3}]'
                    L.append(f'v_mfma_f32_16x16x32_bf16 v[{C}:{C+3}], v[{A}:{A+3}], v[{B}:{B+3}], {src}')
        return L
    def dots(s):
        fb=152+40*(s&1); L=[]
        for e in range(4):
            for jj in range(2):
                R=fb+4*jj+e
                L.append(f'v_dot2_f32_bf16 v{28+jj}, v{R}, s40, v{28+jj}')
                L.append(f'v_dot2_f32_bf16 v{30+jj}, v{R}, v{R}, v{30+jj}')
        return L
    a('s_setprio 2'); a.stamp(1)
    for s in range(21):
        if s<20: a('s_barrier')
        if s in (0,1,2,5,10,15,20): a.stamp(2+(0,1,2,5,10,15,20).index(s))
        R=reads(s) if s<20 else []; M=mfmas(s-1) if s>0 else []; D=dots(s-1) if s>0 else []
        if s==20:
            for x in D: a(x)
            D=[]
            a(M.pop(0)); a(M.pop(0))
            kq_reduce(a,[28,29,30,31],2)
            a('s_mov_b32 s32, 0x3acccccd\nv_and_b32 v3, 15, v1\nv_lshlrev_b32 v3, 4, v3')
            for jj in range(2):
                m=28+jj; q=30+jj; S=152+4*jj
                D+=f'''v_mul_f32 v{m}, s32, v{m}
                v_mul_f32 v{q}, s32, v{q}
                v_fma_f32 v{q}, -v{m}, v{m}, v{q}
                v_max_f32 v{q}, 0, v{q}
                v_cvt_pk_bf16_f32 v{m}, v{m}, v{q}
                v_lshlrev_b32 v{S}, 16, v{m}
                v_and_b32 v{q}, 0xffff0000, v{m}
                v_add_f32 v{q}, 0x3727c5ac, v{q}
                v_cvt_pk_bf16_f32 v{q}, v{q}, v{q}
                v_and_b32 v{q}, 0xffff0000, v{q}
                v_sqrt_f32 v{q}, v{q}
                v_xor_b32 v{S}, 0x80000000, v{S}
                v_cvt_pk_bf16_f32 v{q}, v{q}, v{q}
                v_and_b32 v{q}, 0xffff0000, v{q}
                v_rcp_f32 v{S+1}, v{q}
                v_mul_f32 v{S+2}, v{q}, v{q}
                s_lshl_b32 s33, s{36+jj}, 8
                s_add_u32 s33, s33, {FST}
                v_add_u32 v{4+jj}, s33, v3
                ds_write_b128 v{4+jj}, v[{S}:{S+3}]'''.split('\n')
        k=0
        while R or M or D:
            if M: a(M.pop(0))
            if R: a(R.pop(0))
            if D and (k>=4 or s==20): a(D.pop(0))
            if D and s==20: a(D.pop(0))
            k+=1
        a('s_waitcnt lgkmcnt(0)')
    a(f'''s_barrier
    s_lshl_b32 s33, s38, 8
    s_add_u32 s33, s33, {FST}
    v_add_u32 v4, s33, v3
    s_lshl_b32 s33, s39, 8
    s_add_u32 s33, s33, {FST}
    v_add_u32 v5, s33, v3
    ds_read_b128 v[160:163], v4
    ds_read_b128 v[164:167], v5
    s_lshl_b32 s21, s16, 3
    s_mul_i32 s22, s17, 3
    s_lshl_b32 s26, s20, 11
    s_lshl_b32 s23, s20, 3
    s_add_u32 s23, s23, 1024
    v_lshlrev_b32 v4, 4, v1
    v_add_u32 v5, s23, v4
    v_add_u32 v4, s26, v4
    s_mov_b32 s34, 0xbdd2d3e8
    s_mov_b32 s35, 0xbdd2d3e8
    v_mov_b32 v6, 0xc0135761
    v_mov_b32 v7, 0xc0135761
    s_waitcnt vmcnt(0)''')
    a.stamp(9)
    for jj in range(4):
        S=152+4*jj
        if jj==2: a('s_waitcnt lgkmcnt(0)')
        P=[(56+(jj*3+ii)*8+2*h, 32+8*ii+2*h) for ii in range(3) for h in range(2)]
        T=lambda i: 168+2*i
        for g,c in P: a(f'v_pk_fma_f32 v[{g}:{g+1}], v[{c}:{c+1}], v[{S}:{S+1}], v[{g}:{g+1}] op_sel_hi:[1,0,1]')
        for g,c in P: a(f'v_pk_fma_f32 v[{g+4}:{g+5}], v[{c+4}:{c+5}], v[{S}:{S+1}], v[{g+4}:{g+5}] op_sel_hi:[1,0,1]')
        for g,c in P: a(f'v_pk_mul_f32 v[{g+4}:{g+5}], v[{g+4}:{g+5}], v[{g}:{g+1}]')
        for g,c in P: a(f'v_pk_mul_f32 v[{g}:{g+1}], v[{g}:{g+1}], v[{S}:{S+1}] op_sel:[0,1] op_sel_hi:[1,1]')
        for i,(g,c) in enumerate(P): a(f'v_pk_mul_f32 v[{T(i)}:{T(i)+1}], v[{g}:{g+1}], v[{g}:{g+1}]')
        for i,(g,c) in enumerate(P): a(f'v_pk_fma_f32 v[{T(i)}:{T(i)+1}], v[{T(i)}:{T(i)+1}], s[34:35], v[6:7]')
        for i,(g,c) in enumerate(P): a(f'v_pk_mul_f32 v[{T(i)}:{T(i)+1}], v[{T(i)}:{T(i)+1}], v[{g}:{g+1}]')
        for i in range(12): a(f'v_exp_f32 v{168+i}, v{168+i}')
        a(f's_add_u32 s27, s21, s{36+jj}\ns_mul_i32 s27, s27, 48')
        for i,(g,c) in enumerate(P): a(f'v_pk_fma_f32 v[{T(i)}:{T(i)+1}], v[{T(i)}:{T(i)+1}], v[{S+2}:{S+3}], v[{S+2}:{S+3}] op_sel_hi:[1,0,0]')
        for i in range(12): a(f'v_rcp_f32 v{168+i}, v{168+i}')
        a(f's_add_u32 s27, s27, s22\ns_lshl_b32 s27, s27, 10\ns_add_u32 s27, s27, {HH}')
        for i,(g,c) in enumerate(P): a(f'v_pk_mul_f32 v[{T(i)}:{T(i)+1}], v[{T(i)}:{T(i)+1}], v[{g+4}:{g+5}]')
        O=184+8*jj
        for i in range(6): a(f'v_cvt_pk_bf16_f32 v{O+i}, v{T(i)}, v{T(i)+1}')
        a(f'''buffer_store_dwordx4 v[{O}:{O+3}], v4, s[28:31], s27 offen
        buffer_store_dwordx2 v[{O+4}:{O+5}], v5, s[28:31], s27 offen''')
    a.stamp(10); a('s_waitcnt vmcnt(0)') if DBG>=0 else 0; a.stamp(11); a.dump(12,18,0,0)
    a('s_endpgm')
    a.lab('L_k2_ld')
    a(f'''s_sub_u32 s18, s18, 4
    v_lshrrev_b32 v3, 4, v1
    v_and_b32 v4, 15, v1
    s_lshl_b32 s19, s18, 3
    s_lshl_b32 s24, s16, 8
    s_add_u32 s24, s24, {HT}
    s_lshl_b32 s26, s18, 11
    s_mul_i32 s27, s18, 3072
    s_mul_i32 s25, s17, {20*12288}
    s_add_u32 s25, s25, s27
    s_add_u32 s25, s25, {WGP}
    s_add_u32 s27, s27, 8192
    v_lshlrev_b32 v12, 4, v1''')
    for pp in range(2):
        a(f'''v_add_u32 v5, {4*pp}, v3
        v_lshlrev_b32 v6, 1, v5
        v_xor_b32 v6, v6, v4
        v_add_u32 v5, s19, v5
        v_lshlrev_b32 v7, 12, v5
        v_lshl_add_u32 v{10+pp}, v6, 4, v7''')
    a('s_waitcnt lgkmcnt(0)')
    a.srd(28,12,0,0x1600000)
    def issue(s):
        sl=(s%NS)*SL
        for pp in range(2):
            a(f's_add_u32 m0, s26, {sl+1024*pp}\ns_nop 0\nbuffer_load_dwordx4 v{10+pp}, s[28:31], s24 offen lds')
        a(f's_add_u32 m0, s27, {sl}\ns_add_u32 s24, s24, 131072')
        for pp in range(3):
            a(f'buffer_load_dwordx4 v12, s[28:31], s25 offen offset:{1024*pp} lds')
        a('s_add_u32 s25, s25, 12288')
    a.stamp(1)
    for s in range(NS): issue(s)
    a.stamp(2)
    last=NS-1
    for s in range(20):
        a(f's_waitcnt vmcnt({5*(last-s)})')
        if s in (0,1,2,5,10,15,19): a.stamp(3+(0,1,2,5,10,15,19).index(s))
        a('s_barrier')
        if s>=1 and s-1+NS<20: issue(s-1+NS); last=s-1+NS
    a('s_barrier'); a.stamp(10); a.dump(11,18,0,16)
    a.lab('L_k2_end'); a('s_endpgm')
    return desc('k2_kernel',232,64)
```

```python
from common import *
N3=6; RES=61440; K3LDS=RES+4*3072
def gen_k3(a):
    a.head('k3_kernel'); a.stamp(0)
    a(f'''s_cmp_ge_u32 s2, 256
    s_cbranch_scc1 L_k3_end
    s_load_dwordx2 s[10:11], s[0:1], 80
    s_load_dwordx2 s[12:13], s[0:1], 96
    s_and_b32 s14, s2, 7
    s_lshr_b32 s15, s2, 3
    s_and_b32 s16, s14, 3
    s_lshl_b32 s16, s16, 3
    s_and_b32 s17, s15, 7
    s_add_u32 s16, s16, s17
    s_lshr_b32 s17, s14, 2
    s_lshl_b32 s17, s17, 2
    s_lshr_b32 s15, s15, 3
    s_add_u32 s17, s17, s15
    v_lshrrev_b32 v2, 6, v0
    v_and_b32 v1, 63, v0
    v_lshlrev_b32 v3, 4, v1
    v_readfirstlane_b32 s18, v2
    v_add_u32 v4, 4096, v3
    v_add_u32 v5, 8192, v3
    s_mul_i32 s25, s17, 160
    s_lshl_b32 s26, s16, 2
    s_mul_i32 s27, s18, 12
    s_mul_i32 s24, s17, 48
    s_add_u32 s24, s24, s27
    s_mul_i32 s24, s24, 5120
    s_add_u32 s24, s24, {WDP}''')
    for jj in range(4):
        a(f'''s_add_u32 s{36+jj}, s18, {jj}
        s_and_b32 s{36+jj}, s{36+jj}, 3
        s_add_u32 s{32+jj}, s{36+jj}, s26
        s_mul_i32 s{32+jj}, s{32+jj}, 48
        s_add_u32 s{32+jj}, s{32+jj}, s27
        s_lshl_b32 s{32+jj}, s{32+jj}, 10
        s_add_u32 s{32+jj}, s{32+jj}, {HH}''')
    a('s_waitcnt lgkmcnt(0)')
    a.srd(28,12,0,0x1200000); a.srd(40,10,0,2621440)
    Q=[]
    def wait(tag):
        i=max(k for k,t in enumerate(Q) if t==tag); a(f's_waitcnt vmcnt({len(Q)-1-i})')
    FB=lambda s: 16+36*(s%N3)
    def issue(s):
        for p in range(5):
            R=FB(s)+4*p
            a(f'buffer_load_dwordx4 v[{R}:{R+3}], v{3+(p>>2)}, s[28:31], s24 offen offset:{(p&3)*1024}'); Q.append(s)
        a(f's_add_u32 s24, s24, 5120')
        for jj in range(4):
            R=FB(s)+20+4*jj
            a(f'buffer_load_dwordx4 v[{R}:{R+3}], v{3+(s>>2)}, s[28:31], s{32+jj} offen offset:{(s&3)*1024}'); Q.append(s)
    a.stamp(1)
    for s in range(N3): issue(s)
    a.stamp(2)
    a(f'''v_lshrrev_b32 v7, 2, v1
    v_and_b32 v8, 3, v1
    v_lshlrev_b32 v8, 3, v8
    v_lshl_add_u32 v8, v7, 5, v8
    s_mul_i32 s44, s18, 3072
    s_add_u32 s44, s44, {RES}
    v_add_u32 v8, s44, v8
    v_lshrrev_b32 v7, 1, v1
    v_lshlrev_b32 v7, 12, v7
    v_and_b32 v9, 1, v1
    v_lshl_add_u32 v7, v9, 4, v7
    s_mul_i32 s45, s17, {80*4096}
    s_lshl_b32 s46, s16, 7
    s_add_u32 s45, s45, s46
    s_lshl_b32 s46, s18, 5
    s_add_u32 s45, s45, s46
    s_add_u32 s45, s45, {HT}''')
    for p in range(3):
        a(f's_add_u32 m0, s44, {1024*p}\ns_nop 0\nbuffer_load_dwordx4 v7, s[28:31], s45 offen lds\ns_add_u32 s45, s45, {32*4096}'); Q.append(99)
    for jj in range(1,4):
        a(f's_mul_i32 s46, s{36+jj}, 15360\nv_add_u32 v{9+jj}, s46, v3')
    a(f'''s_mul_i32 s46, s18, 15360
    v_add_u32 v9, s46, v3
    v_and_b32 v6, 15, v1
    s_lshl_b32 s46, s16, 6
    s_lshl_b32 s47, s18, 4
    s_add_u32 s46, s46, s47
    v_add_u32 v6, s46, v6
    v_mul_u32_u24 v6, 1280, v6
    v_lshrrev_b32 v7, 4, v1
    v_lshl_add_u32 v6, v7, 3, v6''')
    for s in range(12):
        wait(s)
        if s in (0,1,3,6,9,11): a.stamp(3+(0,1,3,6,9,11).index(s))
        for jj in (1,2,3,0):
            for i in range(5):
                A=FB(s)+4*i; B=FB(s)+20+4*jj
                C=f'v[{232+4*i}:{235+4*i}]' if jj==0 else f'a[{((jj-1)*5+i)*4}:{((jj-1)*5+i)*4+3}]'
                a(f'v_mfma_f32_16x16x32_bf16 {C}, v[{A}:{A+3}], v[{B}:{B+3}], {"0" if s==0 else C}')
        if s+N3<12: issue(s+N3)
    for i in range(5): a(f'ds_read_b64_tr_b16 v[{100+2*i}:{101+2*i}], v8 offset:{512*i}')
    for jj in range(1,4):
        for i in range(5):
            C=((jj-1)*5+i)*4
            a(f'ds_write_b128 v{9+jj}, a[{C}:{C+3}] offset:{((jj-1)*5+i)*1024}')
    a.stamp(9); a('s_waitcnt lgkmcnt(0)\ns_barrier'); a.stamp(10)
    for i in range(5):
        for j in range(3):
            R=140+(i*3+j)*4
            a(f'ds_read_b128 v[{R}:{R+3}], v9 offset:{(j*5+i)*1024}')
    for i in range(5):
        C=232+4*i; R=140+12*i; H=112+4*i
        a(f's_waitcnt lgkmcnt({12-3*i})')
        for h in range(2):
            a(f'v_lshlrev_b32 v{H+2*h}, 16, v{100+2*i+h}\nv_and_b32 v{H+2*h+1}, 0xffff0000, v{100+2*i+h}')
        for h in (0,2):
            a(f'v_pk_add_f32 v[{C+h}:{C+h+1}], v[{C+h}:{C+h+1}], v[{R+h}:{R+h+1}]')
            a(f'v_pk_add_f32 v[{R+4+h}:{R+5+h}], v[{R+4+h}:{R+5+h}], v[{R+8+h}:{R+9+h}]')
        for h in (0,2):
            a(f'v_pk_add_f32 v[{C+h}:{C+h+1}], v[{C+h}:{C+h+1}], v[{R+4+h}:{R+5+h}]')
        for h in (0,2):
            a(f'v_cvt_pk_bf16_f32 v{R+h}, v{C+h}, v{C+h+1}')
        for h in (0,2):
            a(f'v_lshlrev_b32 v{C+h}, 16, v{R+h}\nv_and_b32 v{C+h+1}, 0xffff0000, v{R+h}')
        for h in (0,2):
            a(f'v_pk_add_f32 v[{C+h}:{C+h+1}], v[{C+h}:{C+h+1}], v[{H+h}:{H+h+1}]')
        a(f'v_cvt_pk_bf16_f32 v{R+4}, v{C}, v{C+1}\nv_cvt_pk_bf16_f32 v{R+5}, v{C+2}, v{C+3}')
        a(f'buffer_store_dwordx2 v[{R+4}:{R+5}], v6, s[40:43], s25 offen offset:{32*i}')
    a.stamp(11); a('s_waitcnt vmcnt(0)') if DBG>=0 else 0; a.stamp(12); a.dump(13,18,0,0)
    a.lab('L_k3_end'); a('s_endpgm')
    return desc('k3_kernel',252,64,60)
```

```python
from common import *
NS=7; PRO=3; SL=20480; FST=NS*SL; K2LDS=FST+2048
def kq_reduce(a, regs, tmp):
    for op in ('v_permlane32_swap_b32','v_permlane16_swap_b32'):
        for i,r in enumerate(regs): a(f'v_mov_b32 v{tmp+i}, v{r}')
        a('s_nop 1')
        for i,r in enumerate(regs): a(f'{op} v{r}, v{tmp+i}')
        a('s_nop 1')
        for i,r in enumerate(regs): a(f'v_add_f32 v{r}, v{r}, v{tmp+i}')
def gen_k2(a):
    a.head('k2_kernel'); a.stamp(0)
    a(f'''s_cmp_ge_u32 s2, 256
    s_cbranch_scc1 L_k2_end
    s_load_dwordx2 s[12:13], s[0:1], 96
    s_and_b32 s14, s2, 7
    s_lshr_b32 s15, s2, 3
    s_and_b32 s16, s14, 1
    s_lshl_b32 s16, s16, 3
    s_and_b32 s17, s15, 7
    s_add_u32 s16, s16, s17
    s_lshr_b32 s17, s14, 1
    s_lshl_b32 s17, s17, 2
    s_lshr_b32 s15, s15, 3
    s_add_u32 s17, s17, s15
    v_lshrrev_b32 v2, 6, v0
    v_and_b32 v1, 63, v0
    s_nop 0
    v_readfirstlane_b32 s18, v2
    s_cmp_ge_u32 s18, 4
    s_cbranch_scc1 L_k2_ld''')
    a(f'''s_and_b32 s19, s18, 1
    s_lshr_b32 s20, s18, 1
    v_lshrrev_b32 v3, 2, v1
    v_and_b32 v4, 3, v1
    v_lshlrev_b32 v4, 3, v4
    v_lshl_add_u32 v5, v3, 8, v4
    v_and_b32 v6, 7, v3
    v_lshlrev_b32 v7, 4, v1
    s_lshl_b32 s21, s19, 2
    s_lshl_b32 s22, s20, 2
    s_add_u32 s23, s22, 1
    s_add_u32 s24, s20, 2
    s_lshl_b32 s25, s20, 1''')
    for jj in range(4):
        a(f'''s_add_u32 s{36+jj}, s25, {jj}
        s_and_b32 s{36+jj}, s{36+jj}, 3
        s_add_u32 s{36+jj}, s{36+jj}, s21
        v_xor_b32 v9, s{36+jj}, v6
        v_lshl_add_u32 v{10+jj}, v9, 5, v5
        v_add_u32 v{14+jj}, {3*SL}, v{10+jj}
        v_add_u32 v{18+jj}, {6*SL}, v{10+jj}''')
    for x,sr in ((0,22),(1,24)):
        a(f'''s_lshl_b32 s25, s{sr}, 10
        s_add_u32 s25, s25, 8192
        v_add_u32 v{22+x}, s25, v7
        v_add_u32 v{24+x}, {3*SL}, v{22+x}
        v_add_u32 v{26+x}, {6*SL}, v{22+x}''')
    a(f'''v_lshrrev_b32 v3, 4, v1
    v_lshlrev_b32 v3, 4, v3
    s_mul_i32 s25, s17, 384
    s_add_u32 s25, s25, {CS}
    s_mov_b32 s40, 0x3f803f80
    v_mov_b32 v28, 0
    v_mov_b32 v29, 0
    v_mov_b32 v30, 0
    v_mov_b32 v31, 0
    s_waitcnt lgkmcnt(0)''')
    a.srd(28,12,0,0x1000000)
    for ii in range(3):
        a(f'''s_lshl_b32 s26, s{22+ii}, 6
        s_add_u32 s26, s26, s25
        s_add_u32 s27, s26, 6144
        buffer_load_dwordx4 v[{32+8*ii}:{35+8*ii}], v3, s[28:31], s26 offen
        buffer_load_dwordx4 v[{36+8*ii}:{39+8*ii}], v3, s[28:31], s27 offen''')
    def reads(s):
        sl=s%NS; st=sl//3; o=(sl%3)*SL; fb=152+40*(s&1); L=[]
        for jj in range(4):
            for h in range(2):
                R=fb+4*jj+2*h
                L.append(f'ds_read_b64_tr_b16 v[{R}:{R+1}], v{10+4*st+jj} offset:{o+4096*h}')
        for ii in range(3):
            for gu in range(2):
                R=fb+16+12*gu+4*ii
                L.append(f'ds_read_b128 v[{R}:{R+3}], v{22+2*st+(ii>>1)} offset:{o+6144*gu+1024*(ii&1)}')
        return L
    def mfmas(s):
        fb=152+40*(s&1); L=[]
        for jj in range(4):
            for ii in range(3):
                for gu in range(2):
                    C=56+(jj*3+ii)*8+4*gu; A=fb+16+12*gu+4*ii; B=fb+4*jj
                    src='0' if s==0 else f'v[{C}:{C+3}]'
                    L.append(f'v_mfma_f32_16x16x32_bf16 v[{C}:{C+3}], v[{A}:{A+3}], v[{B}:{B+3}], {src}')
        return L
    def dots(s):
        fb=152+40*(s&1); L=[]
        for jj in range(2):
            B=fb+4*jj
            for x,A in ((0,232+16),(1,B)):
                C=232+8*jj+4*x
                L.append(f'v_mfma_f32_16x16x32_bf16 v[{C}:{C+3}], v[{A}:{A+3}], v[{B}:{B+3}], {"0" if s==0 else f"v[{C}:{C+3}]"}')
        return L
    for e in range(4): a(f'v_mov_b32 v{248+e}, s40')
    a('s_setprio 2'); a.stamp(1)
    for s in range(21):
        if s<20: a('s_barrier')
        if s in (0,1,2,5,10,15,20): a.stamp(2+(0,1,2,5,10,15,20).index(s))
        R=reads(s) if s<20 else []; M=mfmas(s-1) if s>0 else []; D=dots(s-1) if s>0 else []
        if s==20:
            for x in D: a(x)
            D=[]
            for _ in range(8): a(M.pop(0))
            a('''v_and_b32 v3, 3, v1
            v_bfe_u32 v4, v1, 2, 2
            v_lshrrev_b32 v5, 4, v1
            v_cmp_eq_u32 s[42:43], v4, v5
            v_cmp_eq_u32 s[44:45], 1, v3
            v_cmp_eq_u32 s[46:47], 2, v3
            v_cmp_eq_u32 s[48:49], 3, v3''')
            for jj in range(2):
                C=236+8*jj
                a(f'''v_mov_b32 v{28+jj}, v{232+8*jj}
                v_cndmask_b32 v{30+jj}, v{C}, v{C+1}, s[44:45]
                v_cndmask_b32 v{30+jj}, v{30+jj}, v{C+2}, s[46:47]
                v_cndmask_b32 v{30+jj}, v{30+jj}, v{C+3}, s[48:49]
                v_cndmask_b32 v{30+jj}, 0, v{30+jj}, s[42:43]''')
            kq_reduce(a,[30,31],2)
            a('s_mov_b32 s32, 0x3acccccd\nv_and_b32 v3, 15, v1\nv_lshlrev_b32 v3, 4, v3')
            for jj in range(2):
                m=28+jj; q=30+jj; S=152+4*jj
                D+=f'''v_mul_f32 v{m}, s32, v{m}
                v_mul_f32 v{q}, s32, v{q}
                v_fma_f32 v{q}, -v{m}, v{m}, v{q}
                v_max_f32 v{q}, 0, v{q}
                v_cvt_pk_bf16_f32 v{m}, v{m}, v{q}
                v_lshlrev_b32 v{S}, 16, v{m}
                v_and_b32 v{q}, 0xffff0000, v{m}
                v_add_f32 v{q}, 0x3727c5ac, v{q}
                v_cvt_pk_bf16_f32 v{q}, v{q}, v{q}
                v_and_b32 v{q}, 0xffff0000, v{q}
                v_sqrt_f32 v{q}, v{q}
                v_xor_b32 v{S}, 0x80000000, v{S}
                v_cvt_pk_bf16_f32 v{q}, v{q}, v{q}
                v_and_b32 v{q}, 0xffff0000, v{q}
                v_rcp_f32 v{S+1}, v{q}
                v_mul_f32 v{S+2}, v{q}, v{q}
                s_lshl_b32 s33, s{36+jj}, 8
                s_add_u32 s33, s33, {FST}
                v_add_u32 v{4+jj}, s33, v3
                ds_write_b128 v{4+jj}, v[{S}:{S+3}]'''.split('\n')
        k=0
        while R or M or D:
            if M: a(M.pop(0))
            if R: a(R.pop(0))
            if D and (k>=14 or s==20): a(D.pop(0))
            if D and s==20: a(D.pop(0))
            k+=1
        a('s_waitcnt lgkmcnt(0)')
    a(f'''s_barrier
    s_lshl_b32 s33, s38, 8
    s_add_u32 s33, s33, {FST}
    v_add_u32 v4, s33, v3
    s_lshl_b32 s33, s39, 8
    s_add_u32 s33, s33, {FST}
    v_add_u32 v5, s33, v3
    ds_read_b128 v[160:163], v4
    ds_read_b128 v[164:167], v5
    s_lshl_b32 s21, s16, 3
    s_mul_i32 s22, s17, 3
    s_lshl_b32 s26, s20, 11
    s_lshl_b32 s23, s20, 3
    s_add_u32 s23, s23, 1024
    v_lshlrev_b32 v4, 4, v1
    v_add_u32 v5, s23, v4
    v_add_u32 v4, s26, v4
    s_mov_b32 s34, 0xbdd2d3e8
    s_mov_b32 s35, 0xbdd2d3e8
    v_mov_b32 v6, 0xc0135761
    v_mov_b32 v7, 0xc0135761
    s_waitcnt vmcnt(0)''')
    a.stamp(9)
    for jj in range(4):
        S=152+4*jj
        if jj==2: a('s_waitcnt lgkmcnt(0)')
        P=[(56+(jj*3+ii)*8+2*h, 32+8*ii+2*h) for ii in range(3) for h in range(2)]
        T=lambda i: 168+2*i
        for g,c in P: a(f'v_pk_fma_f32 v[{g}:{g+1}], v[{c}:{c+1}], v[{S}:{S+1}], v[{g}:{g+1}] op_sel_hi:[1,0,1]')
        for g,c in P: a(f'v_pk_fma_f32 v[{g+4}:{g+5}], v[{c+4}:{c+5}], v[{S}:{S+1}], v[{g+4}:{g+5}] op_sel_hi:[1,0,1]')
        for g,c in P: a(f'v_pk_mul_f32 v[{g+4}:{g+5}], v[{g+4}:{g+5}], v[{g}:{g+1}]')
        for g,c in P: a(f'v_pk_mul_f32 v[{g}:{g+1}], v[{g}:{g+1}], v[{S}:{S+1}] op_sel:[0,1] op_sel_hi:[1,1]')
        for i,(g,c) in enumerate(P): a(f'v_pk_mul_f32 v[{T(i)}:{T(i)+1}], v[{g}:{g+1}], v[{g}:{g+1}]')
        for i,(g,c) in enumerate(P): a(f'v_pk_fma_f32 v[{T(i)}:{T(i)+1}], v[{T(i)}:{T(i)+1}], s[34:35], v[6:7]')
        for i,(g,c) in enumerate(P): a(f'v_pk_mul_f32 v[{T(i)}:{T(i)+1}], v[{T(i)}:{T(i)+1}], v[{g}:{g+1}]')
        for i in range(12): a(f'v_exp_f32 v{168+i}, v{168+i}')
        a(f's_add_u32 s27, s21, s{36+jj}\ns_mul_i32 s27, s27, 48')
        for i,(g,c) in enumerate(P): a(f'v_pk_fma_f32 v[{T(i)}:{T(i)+1}], v[{T(i)}:{T(i)+1}], v[{S+2}:{S+3}], v[{S+2}:{S+3}] op_sel_hi:[1,0,0]')
        for i in range(12): a(f'v_rcp_f32 v{168+i}, v{168+i}')
        a(f's_add_u32 s27, s27, s22\ns_lshl_b32 s27, s27, 10\ns_add_u32 s27, s27, {HH}')
        for i,(g,c) in enumerate(P): a(f'v_pk_mul_f32 v[{T(i)}:{T(i)+1}], v[{T(i)}:{T(i)+1}], v[{g+4}:{g+5}]')
        O=184+8*jj
        for i in range(6): a(f'v_cvt_pk_bf16_f32 v{O+i}, v{T(i)}, v{T(i)+1}')
        a(f'''buffer_store_dwordx4 v[{O}:{O+3}], v4, s[28:31], s27 offen
        buffer_store_dwordx2 v[{O+4}:{O+5}], v5, s[28:31], s27 offen''')
    a.stamp(10); a('s_waitcnt vmcnt(0)') if DBG>=0 else 0; a.stamp(11); a.dump(12,18,0,0)
    a('s_endpgm')
    a.lab('L_k2_ld')
    a(f'''s_sub_u32 s18, s18, 4
    v_lshrrev_b32 v3, 4, v1
    v_and_b32 v4, 15, v1
    s_lshl_b32 s19, s18, 3
    s_lshl_b32 s24, s16, 8
    s_add_u32 s24, s24, {HT}
    s_lshl_b32 s26, s18, 11
    s_mul_i32 s27, s18, 3072
    s_mul_i32 s25, s17, {20*12288}
    s_add_u32 s25, s25, s27
    s_add_u32 s25, s25, {WGP}
    s_add_u32 s27, s27, 8192
    v_lshlrev_b32 v12, 4, v1''')
    for pp in range(2):
        a(f'''v_add_u32 v5, {4*pp}, v3
        v_lshlrev_b32 v6, 1, v5
        v_xor_b32 v6, v6, v4
        v_add_u32 v5, s19, v5
        v_lshlrev_b32 v7, 12, v5
        v_lshl_add_u32 v{10+pp}, v6, 4, v7''')
    a('s_waitcnt lgkmcnt(0)')
    a.srd(28,12,0,0x1600000)
    def issue(s):
        sl=(s%NS)*SL
        for pp in range(2):
            a(f's_add_u32 m0, s26, {sl+1024*pp}\ns_nop 0\nbuffer_load_dwordx4 v{10+pp}, s[28:31], s24 offen lds')
        a(f's_add_u32 m0, s27, {sl}\ns_add_u32 s24, s24, 131072')
        for pp in range(3):
            a(f'buffer_load_dwordx4 v12, s[28:31], s25 offen offset:{1024*pp} lds')
        a('s_add_u32 s25, s25, 12288')
    a.stamp(1)
    for s in range(PRO): issue(s)
    a.stamp(2)
    last=PRO-1
    for s in range(20):
        a(f's_waitcnt vmcnt({5*(last-s)})')
        if s in (0,1,2,5,10,15,19): a.stamp(3+(0,1,2,5,10,15,19).index(s))
        a('s_barrier')
        for _ in range(2):
            if last+1<20 and last+1<=max(s-1,-1)+NS: last+=1; issue(last)
    a('s_barrier'); a.stamp(10); a.dump(11,18,0,16)
    a.lab('L_k2_end'); a('s_endpgm')
    return desc('k2_kernel',252,64)
```

```python
from common import *
N3=6; PRO3=3; RES=61440; K3LDS=RES+4*3072
def gen_k3(a):
    a.head('k3_kernel'); a.stamp(0)
    a(f'''s_cmp_ge_u32 s2, 256
    s_cbranch_scc1 L_k3_end
    s_load_dwordx2 s[10:11], s[0:1], 80
    s_load_dwordx2 s[12:13], s[0:1], 96
    s_and_b32 s14, s2, 7
    s_lshr_b32 s15, s2, 3
    s_and_b32 s16, s14, 3
    s_lshl_b32 s16, s16, 3
    s_and_b32 s17, s15, 7
    s_add_u32 s16, s16, s17
    s_lshr_b32 s17, s14, 2
    s_lshl_b32 s17, s17, 2
    s_lshr_b32 s15, s15, 3
    s_add_u32 s17, s17, s15
    v_lshrrev_b32 v2, 6, v0
    v_and_b32 v1, 63, v0
    v_lshlrev_b32 v3, 4, v1
    v_readfirstlane_b32 s18, v2
    v_add_u32 v4, 4096, v3
    v_add_u32 v5, 8192, v3
    s_mul_i32 s25, s17, 160
    s_lshl_b32 s26, s16, 2
    s_mul_i32 s27, s18, 12
    s_mul_i32 s24, s17, 48
    s_add_u32 s24, s24, s27
    s_mul_i32 s24, s24, 5120
    s_add_u32 s24, s24, {WDP}''')
    for jj in range(4):
        a(f'''s_add_u32 s{36+jj}, s18, {jj}
        s_and_b32 s{36+jj}, s{36+jj}, 3
        s_add_u32 s{32+jj}, s{36+jj}, s26
        s_mul_i32 s{32+jj}, s{32+jj}, 48
        s_add_u32 s{32+jj}, s{32+jj}, s27
        s_lshl_b32 s{32+jj}, s{32+jj}, 10
        s_add_u32 s{32+jj}, s{32+jj}, {HH}''')
    a('s_waitcnt lgkmcnt(0)')
    a.srd(28,12,0,0x1200000); a.srd(40,10,0,2621440)
    Q=[]
    def wait(tag):
        i=max(k for k,t in enumerate(Q) if t==tag); a(f's_waitcnt vmcnt({len(Q)-1-i})')
    FB=lambda s: 16+36*(s%N3)
    def issue(s):
        for p in range(5):
            R=FB(s)+4*p
            a(f'buffer_load_dwordx4 v[{R}:{R+3}], v{3+(p>>2)}, s[28:31], s24 offen offset:{(p&3)*1024}'); Q.append(s)
        a(f's_add_u32 s24, s24, 5120')
        for jj in range(4):
            R=FB(s)+20+4*jj
            a(f'buffer_load_dwordx4 v[{R}:{R+3}], v{3+(s>>2)}, s[28:31], s{32+jj} offen offset:{(s&3)*1024}'); Q.append(s)
    a.stamp(1)
    for s in range(PRO3): issue(s)
    last=PRO3-1
    a.stamp(2)
    a(f'''v_lshrrev_b32 v7, 2, v1
    v_and_b32 v8, 3, v1
    v_lshlrev_b32 v8, 3, v8
    v_lshl_add_u32 v8, v7, 5, v8
    s_mul_i32 s44, s18, 3072
    s_add_u32 s44, s44, {RES}
    v_add_u32 v8, s44, v8
    v_lshrrev_b32 v7, 1, v1
    v_lshlrev_b32 v7, 12, v7
    v_and_b32 v9, 1, v1
    v_lshl_add_u32 v7, v9, 4, v7
    s_mul_i32 s45, s17, {80*4096}
    s_lshl_b32 s46, s16, 7
    s_add_u32 s45, s45, s46
    s_lshl_b32 s46, s18, 5
    s_add_u32 s45, s45, s46
    s_add_u32 s45, s45, {HT}''')
    for p in range(3):
        a(f's_add_u32 m0, s44, {1024*p}\ns_nop 0\nbuffer_load_dwordx4 v7, s[28:31], s45 offen lds\ns_add_u32 s45, s45, {32*4096}'); Q.append(99)
    for jj in range(1,4):
        a(f's_mul_i32 s46, s{36+jj}, 15360\nv_add_u32 v{9+jj}, s46, v3')
    a(f'''s_mul_i32 s46, s18, 15360
    v_add_u32 v9, s46, v3
    v_and_b32 v6, 15, v1
    s_lshl_b32 s46, s16, 6
    s_lshl_b32 s47, s18, 4
    s_add_u32 s46, s46, s47
    v_add_u32 v6, s46, v6
    v_mul_u32_u24 v6, 1280, v6
    v_lshrrev_b32 v7, 4, v1
    v_lshl_add_u32 v6, v7, 3, v6''')
    for s in range(12):
        wait(s)
        if s in (0,1,3,6,9,11): a.stamp(3+(0,1,3,6,9,11).index(s))
        for jj in (1,2,3,0):
            for i in range(5):
                A=FB(s)+4*i; B=FB(s)+20+4*jj
                C=f'v[{232+4*i}:{235+4*i}]' if jj==0 else f'a[{((jj-1)*5+i)*4}:{((jj-1)*5+i)*4+3}]'
                a(f'v_mfma_f32_16x16x32_bf16 {C}, v[{A}:{A+3}], v[{B}:{B+3}], {"0" if s==0 else C}')
        for _ in range(2):
            if last+1<12 and last+1<=s+N3: last+=1; issue(last)
    for i in range(5): a(f'ds_read_b64_tr_b16 v[{100+2*i}:{101+2*i}], v8 offset:{512*i}')
    for jj in range(1,4):
        for i in range(5):
            C=((jj-1)*5+i)*4
            a(f'ds_write_b128 v{9+jj}, a[{C}:{C+3}] offset:{((jj-1)*5+i)*1024}')
    a.stamp(9); a('s_waitcnt lgkmcnt(0)\ns_barrier'); a.stamp(10)
    for i in range(5):
        for j in range(3):
            R=140+(i*3+j)*4
            a(f'ds_read_b128 v[{R}:{R+3}], v9 offset:{(j*5+i)*1024}')
    for i in range(5):
        C=232+4*i; R=140+12*i; H=112+4*i
        a(f's_waitcnt lgkmcnt({12-3*i})')
        for h in range(2):
            a(f'v_lshlrev_b32 v{H+2*h}, 16, v{100+2*i+h}\nv_and_b32 v{H+2*h+1}, 0xffff0000, v{100+2*i+h}')
        for h in (0,2):
            a(f'v_pk_add_f32 v[{C+h}:{C+h+1}], v[{C+h}:{C+h+1}], v[{R+h}:{R+h+1}]')
            a(f'v_pk_add_f32 v[{R+4+h}:{R+5+h}], v[{R+4+h}:{R+5+h}], v[{R+8+h}:{R+9+h}]')
        for h in (0,2):
            a(f'v_pk_add_f32 v[{C+h}:{C+h+1}], v[{C+h}:{C+h+1}], v[{R+4+h}:{R+5+h}]')
        for h in (0,2):
            a(f'v_cvt_pk_bf16_f32 v{R+h}, v{C+h}, v{C+h+1}')
        for h in (0,2):
            a(f'v_lshlrev_b32 v{C+h}, 16, v{R+h}\nv_and_b32 v{C+h+1}, 0xffff0000, v{R+h}')
        for h in (0,2):
            a(f'v_pk_add_f32 v[{C+h}:{C+h+1}], v[{C+h}:{C+h+1}], v[{H+h}:{H+h+1}]')
        a(f'v_cvt_pk_bf16_f32 v{R+4}, v{C}, v{C+1}\nv_cvt_pk_bf16_f32 v{R+5}, v{C+2}, v{C+3}')
        a(f'buffer_store_dwordx2 v[{R+4}:{R+5}], v6, s[40:43], s25 offen offset:{32*i}')
    a.stamp(11); a('s_waitcnt vmcnt(0)') if DBG>=0 else 0; a.stamp(12); a.dump(13,18,0,0)
    a.lab('L_k3_end'); a('s_endpgm')
    return desc('k3_kernel',252,64,60)
```

```python
KVR=0x000000; XT=0x280000; HT=0x500000; ST1=0x780000; CS=0x782000; HH=0x800000
import os
DBG=int(os.environ.get('DBG','-1'))
EXP=int(os.environ.get('EXP','0'))
class Asm:
    def stamp(s,i):
        if DBG>=0: s(f's_memtime s[{64+2*i}:{65+2*i}]')
    def dump(s,n,wreg,wv,off):
        if DBG<0: return
        L=s.uid('dbg')
        s(f's_cmp_lg_u32 s2, {DBG}\ns_cbranch_scc1 {L}\ns_cmp_lg_u32 s{wreg}, {wv}\ns_cbranch_scc1 {L}\ns_load_dwordx2 s[96:97], s[0:1], 88\ns_mov_b64 exec, 1\nv_mov_b32 v0, 0\ns_waitcnt lgkmcnt(0)')
        for i in range(n): s(f's_sub_u32 s98, s{64+2*i}, s64\nv_mov_b32 v1, s98\nglobal_store_dword v0, v1, s[96:97] offset:{4*(off+i)}')
        s.lab(L)
    def __init__(s): s.l=[]; s.n=0
    def __call__(s, t):
        for x in t.strip('\n').split('\n'): s.l.append('    '+x.strip())
    def lab(s, n): s.l.append(n+':')
    def uid(s, p): s.n+=1; return f'L_{p}_{s.n}'
    def srd(s, d, base, off, nrec, offs=None):
        if offs is not None:
            s(f's_add_u32 s{d}, s{base}, s{offs}\ns_addc_u32 s{d+1}, s{base+1}, 0')
            if off: s(f's_add_u32 s{d}, s{d}, {off}\ns_addc_u32 s{d+1}, s{d+1}, 0')
        elif off: s(f's_add_u32 s{d}, s{base}, {off}\ns_addc_u32 s{d+1}, s{base+1}, 0')
        else: s(f's_mov_b32 s{d}, s{base}\ns_mov_b32 s{d+1}, s{base+1}')
        s(f's_mov_b32 s{d+2}, {nrec}\ns_mov_b32 s{d+3}, 0x00020000')
    def head(s, name):
        s.l += ['.p2align 8', f'.globl {name}', f'.type {name},@function', f'{name}:']
    def text(s): return '\n'.join(s.l)+'\n'
def desc(name, vgpr, sgpr=96, agpr=0):
    acc=(vgpr+3)//4*4
    if DBG>=0: sgpr=100
    return f'''.p2align 6
.amdhsa_kernel {name}
  .amdhsa_next_free_vgpr {acc+agpr if agpr else vgpr}
  .amdhsa_next_free_sgpr {sgpr}
  .amdhsa_accum_offset {acc}
  .amdhsa_group_segment_fixed_size 0
  .amdhsa_kernarg_size 104
  .amdhsa_user_sgpr_count 2
  .amdhsa_user_sgpr_kernarg_segment_ptr 1
  .amdhsa_system_sgpr_workgroup_id_x 1
.end_amdhsa_kernel
'''
def wave_reduce(a, regs):
    for m in ['quad_perm:[1,0,3,2] row_mask:0xf bank_mask:0xf','quad_perm:[2,3,0,1] row_mask:0xf bank_mask:0xf',
              'row_half_mirror row_mask:0xf bank_mask:0xf','row_mirror row_mask:0xf bank_mask:0xf',
              'row_bcast:15 row_mask:0xa bank_mask:0xf','row_bcast:31 row_mask:0xc bank_mask:0xf']:
        a('s_nop 1')
        for r in regs: a(f'v_add_f32_dpp v{r}, v{r}, v{r} {m}')
    a('s_nop 1')
WDP=0x1000000; WGP=0x1200000
def pack(a, srd_src, srd_ws, NO, magic, sh, rowb, nb, nks, fr, tid_s, dstbase_s):
    m2={5:13108,6:10923}[nb]
    a(f'''v_add_u32 v1, s{tid_s}, v0
    v_mul_u32_u24 v2, {magic}, v1
    v_lshrrev_b32 v2, {sh}, v2
    v_mul_u32_u24 v3, {NO}, v2
    v_sub_u32 v1, v1, v3
    v_lshrrev_b32 v3, 2, v2
    v_and_b32 v2, 3, v2
    v_lshlrev_b32 v4, 3, v3
    v_add_u32 v4, v4, v2
    v_mul_u32_u24 v4, {4*rowb}, v4
    v_lshl_add_u32 v4, v1, 4, v4
    s_movk_i32 s60, {rowb}
    s_movk_i32 s61, {2*rowb}
    s_movk_i32 s62, {3*rowb}
    v_add_u32 v5, {16*rowb}, v4''')
    for e in range(8):
        so=['0','s60','s61','s62'][e&3]
        a(f'buffer_load_dwordx4 v[{10+4*e}:{13+4*e}], v{4+(e>>2)}, s[{srd_src}:{srd_src+3}], {so} offen')
    a(f'''v_lshrrev_b32 v6, 1, v1
    v_mul_u32_u24 v7, {m2}, v6
    v_lshrrev_b32 v7, 16, v7
    v_mul_u32_u24 v8, {nb}, v7
    v_sub_u32 v6, v6, v8
    v_mad_u32_u24 v7, v7, {nks}, v3
    v_mad_u32_u24 v7, v7, {fr}, v6
    v_lshlrev_b32 v7, 10, v7
    v_lshl_add_u32 v7, v2, 8, v7
    v_and_b32 v1, 1, v1
    v_lshl_add_u32 v7, v1, 7, v7
    s_mov_b32 s60, 0x05040100
    s_mov_b32 s61, 0x07060302
    v_lshrrev_b32 v1, 6, v0
    v_mul_u32_u24 v1, 8448, v1
    v_and_b32 v2, 63, v0
    v_and_b32 v3, 7, v0
    v_bfe_u32 v4, v0, 3, 3
    v_lshl_add_u32 v5, v2, 2, v1
    ds_write_b32 v5, v7 offset:8192
    v_lshl_add_u32 v5, v4, 2, v1
    v_xor_b32 v6, v3, v4
    v_lshl_add_u32 v6, v6, 4, v1
    v_lshl_add_u32 v6, v4, 7, v6
    v_lshl_add_u32 v1, v2, 7, v1
    v_lshlrev_b32 v3, 4, v3
    v_add_u32 v1, v1, v3
    s_waitcnt lgkmcnt(0)''')
    for i in range(8): a(f'ds_read_b32 v{80+i}, v5 offset:{8192+32*i}')
    a('s_waitcnt vmcnt(0)')
    for j in range(8):
        for e in range(4):
            a(f'v_perm_b32 v{42+4*j+e}, v{10+4*(2*e+1)+(j>>1)}, v{10+4*(2*e)+(j>>1)}, s{60+(j&1)}')
        a(f'v_xor_b32 v2, {16*j}, v1\nds_write_b128 v2, v[{42+4*j}:{45+4*j}]')
    a('s_waitcnt lgkmcnt(0)')
    for i in range(8): a(f'ds_read_b128 v[{10+4*i}:{13+4*i}], v6 offset:{1024*i}\nv_add_u32 v{80+i}, v{80+i}, v3')
    for i in range(8):
        a(f's_waitcnt lgkmcnt({7-i})\nbuffer_store_dwordx4 v[{10+4*i}:{13+4*i}], v{80+i}, s[{srd_ws}:{srd_ws+3}], s{dstbase_s} offen')
    a('s_endpgm')
```

```python
from common import *
K0G=160+128+120
def gen_k0(a):
    a.head('k0_kernel'); a.stamp(0)
    a(f'''s_cmp_ge_u32 s2, {K0G}
    s_cbranch_scc1 L_k0_end
    s_load_dwordx4 s[4:7], s[0:1], 0
    s_load_dwordx4 s[8:11], s[0:1], 16
    s_load_dwordx2 s[12:13], s[0:1], 96
    s_load_dwordx4 s[48:51], s[0:1], 56
    s_cmp_ge_u32 s2, 160
    s_cbranch_scc1 L_k0_o
    s_and_b32 s14, s2, 31
    s_lshr_b32 s15, s2, 5
    v_lshrrev_b32 v1, 5, v0
    v_and_b32 v2, 31, v0
    s_lshl_b32 s16, s14, 6
    v_lshl_add_u32 v3, v1, 3, s16
    s_lshl_b32 s17, s15, 7
    v_lshl_add_u32 v4, v2, 2, s17
    v_mul_u32_u24 v5, 1280, v3
    v_lshl_add_u32 v5, v4, 1, v5
    v_subrev_u32 v6, 3840, v5
    v_lshlrev_b32 v7, 3, v4
    s_movk_i32 s40, 3840
    s_movk_i32 s41, 7680
    s_mov_b32 s19, 0
    s_waitcnt lgkmcnt(0)''')
    a.srd(20,4,0,2621440); a.srd(24,6,0,2621440); a.srd(28,8,0,2621440); a.srd(32,10,0,5120); a.srd(36,12,0,0x800000)
    def rowld(dst, srd, j):
        so=['0','s40','s41'][j//3]; a(f'buffer_load_dwordx2 v[{dst}:{dst+1}], v5, s[{srd}:{srd+3}], {so} offen offset:{(j%3)*1280}')
    a('buffer_load_dwordx4 v[8:11], v7, s[32:35], 0 offen\nbuffer_load_dwordx4 v[12:15], v7, s[32:35], 0 offen offset:16')
    for j in range(3): a(f'buffer_load_dwordx2 v[{16+2*j}:{17+2*j}], v6, s[24:27], 0 offen offset:{j*1280}')
    for j in range(8): rowld(22+2*j,24,j)
    for j in range(8): rowld(38+2*j,28,j)
    for j in range(8): rowld(54+2*j,20,j)
    a(f'''v_and_b32 v7, 7, v2
    v_xor_b32 v7, v7, v1
    v_lshlrev_b32 v7, 4, v7
    v_lshl_add_u32 v7, v2, 9, v7
    v_lshrrev_b32 v3, 3, v0
    v_and_b32 v4, 7, v0
    v_xor_b32 v6, v4, v1
    v_lshlrev_b32 v6, 4, v6
    v_lshl_add_u32 v6, v3, 7, v6
    v_add_u32 v3, s17, v3
    v_lshlrev_b32 v3, 12, v3
    v_lshl_add_u32 v4, v4, 3, s16
    v_lshlrev_b32 v4, 1, v4
    v_sub_u32 v2, v3, v4
    v_add_u32 v2, 4080, v2
    v_add_u32 v1, v3, v4
    v_add_u32 v1, {XT}, v1
    s_mov_b32 s44, 0x05040100
    s_mov_b32 s45, 0x07060302
    s_mov_b32 s46, 0x20000
    s_mov_b32 s47, 0x40000
    s_mov_b32 s52, 0x60000
    s_waitcnt vmcnt(16)''')
    a.stamp(1)
    so=['0','s46','s47','s52']
    for p in range(2):
        for tap in range(4):
            for h in range(2):
                src=8+2*(2*p+h)+(tap>>1); d=70+8*p+2*tap+h
                a(f'v_and_b32 v{d}, 0xffff0000, v{src}' if tap&1 else f'v_lshlrev_b32 v{d}, 16, v{src}')
    for p in range(2):
        for j in range(11): a(f'v_lshlrev_b32 v{88+2*j}, 16, v{16+2*j+p}\nv_and_b32 v{89+2*j}, 0xffff0000, v{16+2*j+p}')
        W=lambda t: f'v[{70+8*p+2*t}:{71+8*p+2*t}]'
        K=lambda j: f'v[{88+2*j}:{89+2*j}]'
        D=lambda j: f'v[{110+2*j}:{111+2*j}]'
        for j in range(8): a(f'v_pk_mul_f32 {D(j)}, {K(j)}, {W(3)}')
        for tap in (2,1,0):
            for j in range(8): a(f'v_pk_fma_f32 {D(j)}, {K(j+3-tap)}, {W(tap)}, {D(j)}')
        if p==0: a('s_waitcnt vmcnt(8)')
        for j in range(8): a(f'v_lshlrev_b32 v{88+2*j}, 16, v{38+2*j+p}\nv_and_b32 v{89+2*j}, 0xffff0000, v{38+2*j+p}')
        for j in range(8): a(f'v_pk_mul_f32 {D(j)}, {D(j)}, {K(j)}')
        for h in range(2):
            O=126+8*p+4*h
            for i in range(4): a(f'v_cvt_pk_bf16_f32 v{O+i}, v{110+2*(7-2*i)+h}, v{110+2*(6-2*i)+h}')
            a(f'ds_write_b128 v7, v[{O}:{O+3}] offset:{128*(2*p+h)}')
    a('s_waitcnt vmcnt(0)')
    for c in range(4):
        O=88+4*c
        for i in range(4): a(f'v_perm_b32 v{O+i}, v{54+2*(2*i+1)+(c>>1)}, v{54+2*(2*i)+(c>>1)}, s{44+(c&1)}')
        a(f'ds_write_b128 v7, v[{O}:{O+3}] offset:{16384+128*c}')
    a('s_waitcnt lgkmcnt(0)\ns_barrier')
    for i in range(8): a(f'ds_read_b128 v[{8+4*i}:{11+4*i}], v6 offset:{4096*i}')
    for i in range(8): a(f's_waitcnt lgkmcnt({7-i})\nbuffer_store_dwordx4 v[{8+4*i}:{11+4*i}], v{2-(i>>2)}, s[36:39], {so[i&3]} offen')
    a.stamp(2); a('s_waitcnt vmcnt(0)') if DBG>=0 else 0; a.stamp(3); a.dump(4,19,0,0)
    a('s_endpgm')
    a.lab('L_k0_o')
    a('''s_cmp_ge_u32 s2, 288
    s_cbranch_scc1 L_k0_p
    v_lshrrev_b32 v2, 6, v0
    v_and_b32 v1, 63, v0
    s_sub_u32 s14, s2, 160
    v_readfirstlane_b32 s15, v2
    s_lshl_b32 s14, s14, 2
    s_add_u32 s14, s14, s15
    s_mul_i32 s15, s14, 5120
    v_lshlrev_b32 v3, 4, v1
    v_lshlrev_b32 v4, 2, v1
    s_add_u32 s16, s15, 2560
    s_waitcnt lgkmcnt(0)''')
    a.srd(20,4,0,2621440); a.srd(36,12,0,0x800000)
    for r in range(4):
        a(f'buffer_load_dwordx4 v[{10+6*r}:{13+6*r}], v3, s[20:23], s{15+(r>>1)} offen offset:{(r&1)*1280}')
        a(f'buffer_load_dword v{14+6*r}, v4, s[20:23], s{15+(r>>1)} offen offset:{(r&1)*1280+1024}')
    a('s_mov_b32 s17, 0x3f803f80\ns_mov_b32 s49, 0x3acccccd')
    for r in range(8): a(f'v_mov_b32 v{40+r}, 0')
    for r in range(4):
        a(f's_waitcnt vmcnt({6-2*r})')
        for i in range(5):
            a(f'v_dot2_f32_bf16 v{40+r}, v{10+6*r+i}, s17, v{40+r}\nv_dot2_f32_bf16 v{44+r}, v{10+6*r+i}, v{10+6*r+i}, v{44+r}')
    a('s_nop 2')
    wave_reduce(a,list(range(40,48)))
    for r in range(4):
        a(f'''v_mul_f32 v{40+r}, s49, v{40+r}
        v_mul_f32 v{44+r}, s49, v{44+r}
        v_fma_f32 v{44+r}, -v{40+r}, v{40+r}, v{44+r}
        v_max_f32 v{44+r}, 0, v{44+r}
        v_cvt_pk_bf16_f32 v{44+r}, v{44+r}, v{44+r}
        v_and_b32 v{44+r}, 0xffff0000, v{44+r}
        v_add_f32 v{44+r}, 0x3727c5ac, v{44+r}
        v_cvt_pk_bf16_f32 v{44+r}, v{44+r}, v{44+r}
        v_and_b32 v{44+r}, 0xffff0000, v{44+r}
        v_sqrt_f32 v{44+r}, v{44+r}
        s_nop 0
        v_cvt_pk_bf16_f32 v{48+r}, v{40+r}, v{44+r}''')
    a(f'''s_lshl_b32 s14, s14, 4
    s_add_u32 s14, s14, {ST1}
    v_mov_b32 v3, 0
    s_mov_b32 exec_lo, 0
    s_mov_b32 exec_hi, 0x80000000
    buffer_store_dwordx4 v[48:51], v3, s[36:39], s14 offen
    s_endpgm''')
    a.lab('L_k0_p')
    if EXP==2: a('s_endpgm')
    a(f'''s_sub_u32 s14, s2, 288
    s_cmp_ge_u32 s14, 60
    s_cselect_b32 s15, 60, 0
    s_sub_u32 s15, s14, s15
    s_lshl_b32 s15, s15, 8
    s_waitcnt lgkmcnt(0)
    s_cmp_ge_u32 s14, 60
    s_cselect_b32 s48, s50, s48
    s_cselect_b32 s49, s51, s49
    s_cselect_b32 s16, 6144, 0''')
    a.srd(20,48,0,1966080); a.srd(36,12,WGP,0x400000)
    pack(a,20,36,192,21846,22,3072,6,20,12,15,16)
    a.lab('L_k0_end'); a('s_endpgm')
    return desc('k0_kernel',144,64)
```

```python
from common import *
from k2 import kq_reduce
CSZ=4128
NCS=108
BO=8*CSZ; K1LDS=BO+5120
def rnd(a, x, y, t):
    a(f'v_cvt_pk_bf16_f32 v{t}, v{x}, v{y}\nv_lshlrev_b32 v{x}, 16, v{t}\nv_and_b32 v{y}, 0xffff0000, v{t}')
def gen_k1(a):
    a.head('k1_kernel'); a.stamp(0)
    a(f'''s_cmp_ge_u32 s2, {NCS+640}
    s_cbranch_scc1 L_k1_end
    s_load_dwordx4 s[4:7], s[0:1], 32
    s_load_dwordx2 s[8:9], s[0:1], 72
    s_load_dwordx2 s[12:13], s[0:1], 96
    v_and_b32 v1, 63, v0
    v_lshrrev_b32 v2, 6, v0
    s_cmp_lt_u32 s2, {NCS}
    s_cbranch_scc1 L_k1_cs
    s_sub_u32 s14, s2, {NCS}
    s_lshl_b32 s15, s14, 12
    s_lshl_b32 s16, s14, 1
    s_and_b32 s17, s16, 2
    s_and_b32 s16, s16, -4
    v_readfirstlane_b32 s18, v2
    v_lshlrev_b32 v3, 4, v0
    v_subrev_u32 v4, 32, v3
    v_subrev_u32 v5, 16, v3
    v_and_b32 v6, 15, v0
    v_bfe_u32 v7, v0, 4, 2
    s_waitcnt lgkmcnt(0)
    s_load_dword s19, s[6:7], s16''')
    a.srd(20,4,0,4096,15); a.srd(24,12,KVR,4096,15); a.srd(28,12,0,0x800000)
    a(f'''s_cmp_lg_u32 s18, 0
    s_cbranch_scc1 L_k1_n0
    s_mov_b64 exec, 3
    buffer_load_dwordx4 v[42:45], v3, s[20:23], 0 offen offset:4064
    buffer_load_dwordx4 v[46:49], v3, s[20:23], 0 offen offset:4080
    s_mov_b64 exec, -1''')
    a.lab('L_k1_n0')
    a(f'''buffer_load_dwordx4 v[10:13], v4, s[20:23], 0 offen
    buffer_load_dwordx4 v[14:17], v5, s[20:23], 0 offen
    v_lshlrev_b32 v8, 4, v7
    v_lshl_add_u32 v8, v2, 7, v8
    v_lshlrev_b32 v9, 5, v6
    v_sub_u32 v8, v8, v9
    v_add_u32 v8, {480+BO}, v8
    s_lshl_b32 s35, s18, 10
    s_add_u32 m0, s35, {BO}
    v_add_u32 v9, 4096, v3
    buffer_load_dwordx4 v3, s[24:27], 0 offen lds
    s_mov_b32 m0, {BO+4096}
    s_nop 0
    buffer_load_dwordx4 v9, s[24:27], 0 offen lds''')
    a(f'''v_lshlrev_b32 v9, 4, v6
    v_lshl_add_u32 v9, v7, 2, v9
    v_lshl_add_u32 v9, v2, 9, v9
    v_lshlrev_b32 v154, 1, v9
    v_sub_u32 v155, 3576, v154
    v_lshlrev_b32 v156, 2, v9
    s_add_u32 s32, s15, {XT}
    s_add_u32 s33, s15, {HT}
    s_mov_b32 s34, {ST1}
    buffer_load_dwordx2 v[138:139], v154, s[28:31], s32 offen
    buffer_load_dwordx2 v[140:141], v154, s[28:31], s32 offen offset:512
    buffer_load_dwordx2 v[142:143], v155, s[24:27], 0 offen offset:512
    buffer_load_dwordx2 v[144:145], v155, s[24:27], 0 offen
    buffer_load_dwordx4 v[146:149], v156, s[28:31], s34 offen
    buffer_load_dwordx4 v[150:153], v156, s[28:31], s34 offen offset:1024''')
    def build(off):
        for j in range(6): a(f'v_mov_b32 v{18+j}, v{11+j}')
        for j in range(6): a(f'v_alignbit_b32 v{26+j}, v{11+j}, v{10+j}, 16')
        for j in range(6): a(f'v_alignbit_b32 v{32+j}, v{12+j}, v{11+j}, 16')
        for c,R in enumerate([10,26,18,32,12,28,20,34]):
            a(f'ds_write_b128 v3, v[{R}:{R+3}] offset:{c*CSZ+off}')
    a.stamp(1); a('s_waitcnt vmcnt(8)'); a.stamp(2)
    build(0)
    a('''s_cmp_lg_u32 s18, 0
    s_cbranch_scc1 L_k1_nx
    s_mov_b64 exec, 3
    s_nop 2''')
    for e in range(8): a(f'v_mov_b32 v{10+e}, v{42+e}')
    build(4096)
    a('s_mov_b64 exec, -1')
    a.lab('L_k1_nx')
    a(f'''v_add_u32 v4, 1, v6
    v_and_b32 v5, 7, v4
    v_lshrrev_b32 v4, 3, v4
    v_add_u32 v4, v4, v7
    v_lshlrev_b32 v4, 4, v4
    v_mov_b32 v1, {CSZ}
    v_mad_u32_u24 v4, v5, v1, v4
    v_lshl_add_u32 v4, v2, 7, v4
    s_waitcnt lgkmcnt(0) vmcnt(6)
    s_barrier''')
    a.stamp(3)
    def rd(bt):
        r=bt>>1
        for i in range(4):
            av=4*(bt&1)+i; R=10+16*(bt&1)+4*i
            a(f'ds_read_b128 v[{R}:{R+3}], v4 offset:{64*r+512*av}')
    def rdb(r):
        for b in range(8):
            R=74+32*r+4*b
            a(f'ds_read_b128 v[{R}:{R+3}], v8 offset:{3584-512*b+64*r}')
    rd(0); rdb(0)
    seen=set()
    for bt in range(4):
        r=bt>>1
        if bt==0: a('s_waitcnt lgkmcnt(0)'); rd(1); rdb(1)
        elif bt==1: a('s_waitcnt lgkmcnt(8)'); rd(2)
        elif bt==2: a('s_waitcnt lgkmcnt(0)'); rd(3)
        else: a('s_waitcnt lgkmcnt(0)')
        a.stamp(4+bt)
        for i in range(4):
            av=4*(bt&1)+i; A=10+16*(bt&1)+4*i
            for b in range(8-av):
                I=av+b; C=42+4*I; B=74+32*r+4*b
                src=f'v[{C}:{C+3}]' if I in seen else '0'; seen.add(I)
                a(f'v_mfma_f32_16x16x32_bf16 v[{C}:{C+3}], v[{A}:{A+3}], v[{B}:{B+3}], {src}')
    a('''v_and_b32 v1, 63, v0
    v_lshlrev_b32 v1, 4, v1
    v_lshl_add_u32 v5, v2, 13, v1
    v_lshl_add_u32 v1, v2, 11, v1
    s_nop 4
    s_barrier''')
    for I in range(8): a(f'ds_write_b128 v5, v[{42+4*I}:{45+4*I}] offset:{1024*I}')
    a.stamp(8); a('s_waitcnt lgkmcnt(0)\ns_barrier'); a.stamp(9)
    for I in range(2):
        for w in range(4): a(f'ds_read_b128 v[{74+16*I+4*w}:{77+16*I+4*w}], v1 offset:{8192*w+1024*I}')
    a('''s_lshl_b32 s17, s17, 3
    s_lshr_b32 s19, s19, s17
    s_lshl_b32 s19, s19, 16
    s_waitcnt vmcnt(0)''')
    for I in range(2):
        for h in range(2):
            a(f'v_lshlrev_b32 v{10+4*I+2*h}, 16, v{138+2*I+h}\nv_and_b32 v{11+4*I+2*h}, 0xffff0000, v{138+2*I+h}')
            a(f'v_lshlrev_b32 v{18+4*I+3-2*h}, 16, v{142+2*I+h}\nv_and_b32 v{18+4*I+2-2*h}, 0xffff0000, v{142+2*I+h}')
    for e in range(8):
        a(f'v_lshlrev_b32 v{26+e}, 16, v{146+e}\nv_and_b32 v{34+e}, 0xffff0000, v{146+e}')
    for e in range(8): a(f'v_rcp_f32 v{34+e}, v{34+e}')
    for e in range(8): a(f'v_sub_f32 v{26+e}, v{10+e}, v{26+e}\nv_mul_f32 v{18+e}, s19, v{18+e}')
    for e in range(0,8,2): rnd(a,26+e,27+e,2); rnd(a,18+e,19+e,3)
    for e in range(8): a(f'v_mul_f32 v{26+e}, v{26+e}, v{34+e}')
    for e in range(0,8,2): rnd(a,26+e,27+e,2)
    a('s_waitcnt lgkmcnt(0)')
    for I in range(2):
        b=74+16*I
        for j in range(0,4,2):
            a(f'v_pk_add_f32 v[{b+j}:{b+j+1}], v[{b+j}:{b+j+1}], v[{b+4+j}:{b+5+j}]')
            a(f'v_pk_add_f32 v[{b+8+j}:{b+9+j}], v[{b+8+j}:{b+9+j}], v[{b+12+j}:{b+13+j}]')
        for j in range(0,4,2):
            a(f'v_pk_add_f32 v[{b+j}:{b+j+1}], v[{b+j}:{b+j+1}], v[{b+8+j}:{b+9+j}]')
    Y=lambda e: 74+16*(e>>2)+(e&3)
    for e in range(0,8,2): rnd(a,Y(e),Y(e+1),2+(e>>1&1))
    for e in range(8): a(f'v_add_f32 v{18+e}, v{18+e}, v{Y(e)}')
    for e in range(0,8,2): rnd(a,18+e,19+e,2+(e>>1&1))
    for e in range(8): a(f'v_mul_f32 v{18+e}, v{18+e}, v{26+e}')
    for e in range(0,8,2): rnd(a,18+e,19+e,2+(e>>1&1))
    for e in range(8): a(f'v_add_f32 v{18+e}, v{18+e}, v{10+e}')
    for e in range(0,8,2): a(f'v_cvt_pk_bf16_f32 v{26+e//2}, v{18+e}, v{19+e}')
    a('''buffer_store_dwordx2 v[26:27], v154, s[28:31], s33 offen
    buffer_store_dwordx2 v[28:29], v154, s[28:31], s33 offen offset:512''')
    a.stamp(10); a('s_waitcnt vmcnt(0)') if DBG>=0 else 0; a.stamp(11); a.dump(12,18,1,0); a('s_endpgm')
    a.lab('L_k1_cs')
    a(f'''s_cmp_lt_u32 s2, 60
    s_cbranch_scc1 L_k1_pk
    v_readfirstlane_b32 s18, v2
    s_sub_u32 s14, s2, 60
    s_lshl_b32 s14, s14, 2
    s_add_u32 s14, s14, s18
    s_mul_i32 s15, s14, 43691
    s_lshr_b32 s15, s15, 19
    s_mul_i32 s16, s15, 12
    s_sub_u32 s16, s14, s16
    s_mul_i32 s17, s15, 240
    s_add_u32 s17, s17, s16
    s_lshl_b32 s17, s17, 10
    s_add_u32 s17, s17, {WGP}
    v_lshlrev_b32 v3, 4, v1
    s_mov_b32 s40, 0x3f803f80
    v_mov_b32 v4, 0
    s_waitcnt lgkmcnt(0)''')
    a.srd(28,12,0,0x1600000)
    for i in range(20): a(f'buffer_load_dwordx4 v[{8+4*i}:{11+4*i}], v3, s[28:31], s17 offen\ns_add_u32 s17, s17, 12288')
    a(f'''s_cmp_ge_u32 s16, 6
    s_cselect_b32 s19, {6144-384}, 0
    s_mul_i32 s15, s15, 384
    s_lshl_b32 s16, s16, 6
    s_add_u32 s15, s15, s16
    s_add_u32 s15, s15, s19
    s_add_u32 s15, s15, {CS}
    v_and_b32 v3, 15, v1
    v_lshlrev_b32 v3, 2, v3''')
    for i in range(20):
        a(f's_waitcnt vmcnt({19-i})')
        for e in range(4): a(f'v_dot2_f32_bf16 v4, v{8+4*i+e}, s40, v4')
    a('s_nop 2'); kq_reduce(a,[4],5)
    a('buffer_store_dword v4, v3, s[28:31], s15 offen\ns_endpgm')
    a.lab('L_k1_pk')
    a('s_lshl_b32 s15, s2, 8\ns_mov_b32 s16, 0\ns_waitcnt lgkmcnt(0)')
    a.srd(20,8,0,1966080); a.srd(36,12,WDP,0x200000)
    pack(a,20,36,80,52429,22,1280,5,48,5,15,16)
    a.lab('L_k1_end'); a('s_endpgm')
    return desc('k1_kernel',160,64)
```

```python
KVR=0x000000; XT=0x280000; HT=0x500000; ST1=0x780000; RS1=0x782000; CS=0x784000; HH=0x800000
import os
DBG=int(os.environ.get('DBG','-1'))
EXP=int(os.environ.get('EXP','0'))
RT=int(os.environ.get('RT','0'))
class Asm:
    def stamp(s,i):
        if DBG>=0: s(f's_memtime s[{64+2*i}:{65+2*i}]')
    def dump(s,n,wreg,wv,off):
        if DBG<0: return
        L=s.uid('dbg')
        s(f's_cmp_lg_u32 s2, {DBG}\ns_cbranch_scc1 {L}\ns_cmp_lg_u32 s{wreg}, {wv}\ns_cbranch_scc1 {L}\ns_load_dwordx2 s[96:97], s[0:1], 88\ns_mov_b64 exec, 1\nv_mov_b32 v0, 0\ns_waitcnt lgkmcnt(0)')
        for i in range(n): s(f's_sub_u32 s98, s{64+2*i}, s64\nv_mov_b32 v1, s98\nglobal_store_dword v0, v1, s[96:97] offset:{4*(off+i)}')
        s.lab(L)
    def __init__(s): s.l=[]; s.n=0
    def __call__(s, t):
        for x in t.strip('\n').split('\n'):
            if RT and x.strip()=='s_endpgm':
                s.l+=['    '+y for y in ('''s_waitcnt vmcnt(0) lgkmcnt(0)
s_memrealtime s[92:93]
s_load_dwordx2 s[96:97], s[0:1], 96
s_mov_b64 exec, 1
v_lshrrev_b32 v0, 6, v0
v_lshl_add_u32 v0, s2, 3, v0
v_lshlrev_b32 v0, 3, v0
v_add_u32 v0, '''+str(0x8000000+s.k*0x10000)+''', v0
s_waitcnt lgkmcnt(0)
v_mov_b32 v2, s90
v_mov_b32 v3, s92
global_store_dwordx2 v0, v[2:3], s[96:97]''').split('\n')]
            s.l.append('    '+x.strip())
    def lab(s, n): s.l.append(n+':')
    def uid(s, p): s.n+=1; return f'L_{p}_{s.n}'
    def srd(s, d, base, off, nrec, offs=None):
        if offs is not None:
            s(f's_add_u32 s{d}, s{base}, s{offs}\ns_addc_u32 s{d+1}, s{base+1}, 0')
            if off: s(f's_add_u32 s{d}, s{d}, {off}\ns_addc_u32 s{d+1}, s{d+1}, 0')
        elif off: s(f's_add_u32 s{d}, s{base}, {off}\ns_addc_u32 s{d+1}, s{base+1}, 0')
        else: s(f's_mov_b32 s{d}, s{base}\ns_mov_b32 s{d+1}, s{base+1}')
        s(f's_mov_b32 s{d+2}, {nrec}\ns_mov_b32 s{d+3}, 0x00020000')
    def head(s, name):
        s.k=int(name[1])
        s.l += ['.p2align 8', f'.globl {name}', f'.type {name},@function', f'{name}:']
        if RT: s('s_memrealtime s[90:91]')
    def text(s): return '\n'.join(s.l)+'\n'
def desc(name, vgpr, sgpr=96, agpr=0):
    acc=(vgpr+3)//4*4
    if DBG>=0 or RT: sgpr=100
    return f'''.p2align 6
.amdhsa_kernel {name}
  .amdhsa_next_free_vgpr {acc+agpr if agpr else vgpr}
  .amdhsa_next_free_sgpr {sgpr}
  .amdhsa_accum_offset {acc}
  .amdhsa_group_segment_fixed_size 0
  .amdhsa_kernarg_size 104
  .amdhsa_user_sgpr_count 2
  .amdhsa_user_sgpr_kernarg_segment_ptr 1
  .amdhsa_system_sgpr_workgroup_id_x 1
.end_amdhsa_kernel
'''
def wave_reduce(a, regs):
    for m in ['quad_perm:[1,0,3,2] row_mask:0xf bank_mask:0xf','quad_perm:[2,3,0,1] row_mask:0xf bank_mask:0xf',
              'row_half_mirror row_mask:0xf bank_mask:0xf','row_mirror row_mask:0xf bank_mask:0xf',
              'row_bcast:15 row_mask:0xa bank_mask:0xf','row_bcast:31 row_mask:0xc bank_mask:0xf']:
        a('s_nop 1')
        for r in regs: a(f'v_add_f32_dpp v{r}, v{r}, v{r} {m}')
    a('s_nop 1')
WDP=0x1000000; WGP=0x1200000
def pack(a, srd_src, srd_ws, NO, magic, sh, rowb, nb, nks, fr, tid_s, dstbase_s):
    m2={5:13108,6:10923}[nb]
    a(f'''v_add_u32 v1, s{tid_s}, v0
    v_mul_u32_u24 v2, {magic}, v1
    v_lshrrev_b32 v2, {sh}, v2
    v_mul_u32_u24 v3, {NO}, v2
    v_sub_u32 v1, v1, v3
    v_lshrrev_b32 v3, 2, v2
    v_and_b32 v2, 3, v2
    v_lshlrev_b32 v4, 3, v3
    v_add_u32 v4, v4, v2
    v_mul_u32_u24 v4, {4*rowb}, v4
    v_lshl_add_u32 v4, v1, 4, v4
    s_movk_i32 s60, {rowb}
    s_movk_i32 s61, {2*rowb}
    s_movk_i32 s62, {3*rowb}
    v_add_u32 v5, {16*rowb}, v4''')
    for e in range(8):
        so=['0','s60','s61','s62'][e&3]
        a(f'buffer_load_dwordx4 v[{10+4*e}:{13+4*e}], v{4+(e>>2)}, s[{srd_src}:{srd_src+3}], {so} offen')
    a(f'''v_lshrrev_b32 v6, 1, v1
    v_mul_u32_u24 v7, {m2}, v6
    v_lshrrev_b32 v7, 16, v7
    v_mul_u32_u24 v8, {nb}, v7
    v_sub_u32 v6, v6, v8
    v_mad_u32_u24 v7, v7, {nks}, v3
    v_mad_u32_u24 v7, v7, {fr}, v6
    v_lshlrev_b32 v7, 10, v7
    v_lshl_add_u32 v7, v2, 8, v7
    v_and_b32 v1, 1, v1
    v_lshl_add_u32 v7, v1, 7, v7
    s_mov_b32 s60, 0x05040100
    s_mov_b32 s61, 0x07060302
    v_lshrrev_b32 v1, 6, v0
    v_mul_u32_u24 v1, 8448, v1
    v_and_b32 v2, 63, v0
    v_and_b32 v3, 7, v0
    v_bfe_u32 v4, v0, 3, 3
    v_lshl_add_u32 v5, v2, 2, v1
    ds_write_b32 v5, v7 offset:8192
    v_lshl_add_u32 v5, v4, 2, v1
    v_xor_b32 v6, v3, v4
    v_lshl_add_u32 v6, v6, 4, v1
    v_lshl_add_u32 v6, v4, 7, v6
    v_lshl_add_u32 v1, v2, 7, v1
    v_lshlrev_b32 v3, 4, v3
    v_add_u32 v1, v1, v3
    s_waitcnt lgkmcnt(0)''')
    for i in range(8): a(f'ds_read_b32 v{80+i}, v5 offset:{8192+32*i}')
    a('s_waitcnt vmcnt(0)')
    for j in range(8):
        for e in range(4):
            a(f'v_perm_b32 v{42+4*j+e}, v{10+4*(2*e+1)+(j>>1)}, v{10+4*(2*e)+(j>>1)}, s{60+(j&1)}')
        a(f'v_xor_b32 v2, {16*j}, v1\nds_write_b128 v2, v[{42+4*j}:{45+4*j}]')
    a('s_waitcnt lgkmcnt(0)')
    for i in range(8): a(f'ds_read_b128 v[{10+4*i}:{13+4*i}], v6 offset:{1024*i}\nv_add_u32 v{80+i}, v{80+i}, v3')
    for i in range(8):
        a(f's_waitcnt lgkmcnt({7-i})\nbuffer_store_dwordx4 v[{10+4*i}:{13+4*i}], v{80+i}, s[{srd_ws}:{srd_ws+3}], s{dstbase_s} offen')
    a('s_endpgm')
```

```python
from common import *
NS=7; PRO=3; SL=20480; FST=NS*SL; K2LDS=FST+2048
def kq_reduce(a, regs, tmp):
    for op in ('v_permlane32_swap_b32','v_permlane16_swap_b32'):
        for i,r in enumerate(regs): a(f'v_mov_b32 v{tmp+i}, v{r}')
        a('s_nop 1')
        for i,r in enumerate(regs): a(f'{op} v{r}, v{tmp+i}')
        a('s_nop 1')
        for i,r in enumerate(regs): a(f'v_add_f32 v{r}, v{r}, v{tmp+i}')
def gen_k2(a):
    a.head('k2_kernel'); a.stamp(0)
    a(f'''s_cmp_ge_u32 s2, 256
    s_cbranch_scc1 L_k2_end
    s_load_dwordx2 s[12:13], s[0:1], 96
    s_and_b32 s14, s2, 7
    s_lshr_b32 s15, s2, 3
    s_and_b32 s16, s14, 1
    s_lshl_b32 s16, s16, 3
    s_and_b32 s17, s15, 7
    s_add_u32 s16, s16, s17
    s_lshr_b32 s17, s14, 1
    s_lshl_b32 s17, s17, 2
    s_lshr_b32 s15, s15, 3
    s_add_u32 s17, s17, s15
    v_lshrrev_b32 v2, 6, v0
    v_and_b32 v1, 63, v0
    s_nop 0
    v_readfirstlane_b32 s18, v2
    s_cmp_ge_u32 s18, 4
    s_cbranch_scc1 L_k2_ld''')
    a(f'''s_and_b32 s19, s18, 1
    s_lshr_b32 s20, s18, 1
    v_lshrrev_b32 v3, 2, v1
    v_and_b32 v4, 3, v1
    v_lshlrev_b32 v4, 3, v4
    v_lshl_add_u32 v5, v3, 8, v4
    v_and_b32 v6, 7, v3
    v_lshlrev_b32 v7, 4, v1
    s_lshl_b32 s21, s19, 2
    s_lshl_b32 s22, s20, 2
    s_add_u32 s23, s22, 1
    s_add_u32 s24, s20, 2
    s_lshl_b32 s25, s20, 1''')
    for jj in range(4):
        a(f'''s_add_u32 s{36+jj}, s25, {jj}
        s_and_b32 s{36+jj}, s{36+jj}, 3
        s_add_u32 s{36+jj}, s{36+jj}, s21
        v_xor_b32 v9, s{36+jj}, v6
        v_lshl_add_u32 v{10+jj}, v9, 5, v5
        v_add_u32 v{14+jj}, {3*SL}, v{10+jj}
        v_add_u32 v{18+jj}, {6*SL}, v{10+jj}''')
    for x,sr in ((0,22),(1,24)):
        a(f'''s_lshl_b32 s25, s{sr}, 10
        s_add_u32 s25, s25, 8192
        v_add_u32 v{22+x}, s25, v7
        v_add_u32 v{24+x}, {3*SL}, v{22+x}
        v_add_u32 v{26+x}, {6*SL}, v{22+x}''')
    a(f'''v_lshrrev_b32 v3, 4, v1
    v_lshlrev_b32 v3, 4, v3
    s_mul_i32 s25, s17, 384
    s_add_u32 s25, s25, {CS}
    s_mov_b32 s40, 0x3f803f80
    v_mov_b32 v28, 0
    v_mov_b32 v29, 0
    v_mov_b32 v30, 0
    v_mov_b32 v31, 0
    s_waitcnt lgkmcnt(0)''')
    a.srd(28,12,0,0x1000000)
    for ii in range(3):
        a(f'''s_lshl_b32 s26, s{22+ii}, 6
        s_add_u32 s26, s26, s25
        s_add_u32 s27, s26, 6144
        buffer_load_dwordx4 v[{32+8*ii}:{35+8*ii}], v3, s[28:31], s26 offen
        buffer_load_dwordx4 v[{36+8*ii}:{39+8*ii}], v3, s[28:31], s27 offen''')
    def reads(s):
        sl=s%NS; st=sl//3; o=(sl%3)*SL; fb=152+40*(s&1); L=[]
        for jj in range(4):
            for h in range(2):
                R=fb+4*jj+2*h
                L.append(f'ds_read_b64_tr_b16 v[{R}:{R+1}], v{10+4*st+jj} offset:{o+4096*h}')
        for ii in range(3):
            for gu in range(2):
                R=fb+16+12*gu+4*ii
                L.append(f'ds_read_b128 v[{R}:{R+3}], v{22+2*st+(ii>>1)} offset:{o+6144*gu+1024*(ii&1)}')
        return L
    def mfmas(s):
        fb=152+40*(s&1); L=[]
        for jj in range(4):
            for ii in range(3):
                for gu in range(2):
                    C=56+(jj*3+ii)*8+4*gu; A=fb+16+12*gu+4*ii; B=fb+4*jj
                    src='0' if s==0 else f'v[{C}:{C+3}]'
                    L.append(f'v_mfma_f32_16x16x32_bf16 v[{C}:{C+3}], v[{A}:{A+3}], v[{B}:{B+3}], {src}')
        return L
    def dots(s):
        fb=152+40*(s&1); L=[]
        for jj in range(2):
            B=fb+4*jj
            for x,A in ((0,232+16),(1,B)):
                C=232+8*jj+4*x
                L.append(f'v_mfma_f32_16x16x32_bf16 v[{C}:{C+3}], v[{A}:{A+3}], v[{B}:{B+3}], {"0" if s==0 else f"v[{C}:{C+3}]"}')
        return L
    for e in range(4): a(f'v_mov_b32 v{248+e}, s40')
    a('s_setprio 2'); a.stamp(1)
    for s in range(21):
        if s<20: a('s_barrier')
        if s in (0,1,2,5,10,15,20): a.stamp(2+(0,1,2,5,10,15,20).index(s))
        R=reads(s) if s<20 else []; M=mfmas(s-1) if s>0 else []; D=dots(s-1) if s>0 else []
        if s==20:
            for x in D: a(x)
            D=[]
            for _ in range(8): a(M.pop(0))
            a('''v_and_b32 v3, 3, v1
            v_bfe_u32 v4, v1, 2, 2
            v_lshrrev_b32 v5, 4, v1
            v_cmp_eq_u32 s[42:43], v4, v5
            v_cmp_eq_u32 s[44:45], 1, v3
            v_cmp_eq_u32 s[46:47], 2, v3
            v_cmp_eq_u32 s[48:49], 3, v3''')
            for jj in range(2):
                C=236+8*jj
                a(f'''v_mov_b32 v{28+jj}, v{232+8*jj}
                v_cndmask_b32 v{30+jj}, v{C}, v{C+1}, s[44:45]
                v_cndmask_b32 v{30+jj}, v{30+jj}, v{C+2}, s[46:47]
                v_cndmask_b32 v{30+jj}, v{30+jj}, v{C+3}, s[48:49]
                v_cndmask_b32 v{30+jj}, 0, v{30+jj}, s[42:43]''')
            kq_reduce(a,[30,31],2)
            a('s_mov_b32 s32, 0x3acccccd\nv_and_b32 v3, 15, v1\nv_lshlrev_b32 v3, 4, v3')
            for jj in range(2):
                m=28+jj; q=30+jj; S=152+4*jj
                D+=f'''v_mul_f32 v{m}, s32, v{m}
                v_mul_f32 v{q}, s32, v{q}
                v_fma_f32 v{q}, -v{m}, v{m}, v{q}
                v_max_f32 v{q}, 0, v{q}
                v_cvt_pk_bf16_f32 v{m}, v{m}, v{q}
                v_lshlrev_b32 v{S}, 16, v{m}
                v_and_b32 v{q}, 0xffff0000, v{m}
                v_add_f32 v{q}, 0x3727c5ac, v{q}
                v_cvt_pk_bf16_f32 v{q}, v{q}, v{q}
                v_and_b32 v{q}, 0xffff0000, v{q}
                v_sqrt_f32 v{q}, v{q}
                v_xor_b32 v{S}, 0x80000000, v{S}
                v_cvt_pk_bf16_f32 v{q}, v{q}, v{q}
                v_and_b32 v{q}, 0xffff0000, v{q}
                v_rcp_f32 v{S+1}, v{q}
                v_mul_f32 v{S+2}, v{q}, v{q}
                s_lshl_b32 s33, s{36+jj}, 8
                s_add_u32 s33, s33, {FST}
                v_add_u32 v{4+jj}, s33, v3
                ds_write_b128 v{4+jj}, v[{S}:{S+3}]'''.split('\n')
        k=0
        while R or M or D:
            if M: a(M.pop(0))
            if R: a(R.pop(0))
            if D and (k>=14 or s==20): a(D.pop(0))
            if D and s==20: a(D.pop(0))
            k+=1
        a('s_waitcnt lgkmcnt(0)')
    a(f'''s_lshl_b32 s33, s38, 8
    s_add_u32 s33, s33, {FST}
    v_add_u32 v8, s33, v3
    s_lshl_b32 s33, s39, 8
    s_add_u32 s33, s33, {FST}
    v_add_u32 v9, s33, v3
    s_lshl_b32 s21, s16, 3
    s_mul_i32 s22, s17, 3
    s_lshl_b32 s26, s20, 11
    s_lshl_b32 s23, s20, 3
    s_add_u32 s23, s23, 1024
    v_lshlrev_b32 v4, 4, v1
    v_add_u32 v5, s23, v4
    v_add_u32 v4, s26, v4
    s_mov_b32 s34, 0xbdd2d3e8
    s_mov_b32 s35, 0xbdd2d3e8
    v_mov_b32 v6, 0xc0135761
    v_mov_b32 v7, 0xc0135761
    s_waitcnt vmcnt(0)''')
    a.stamp(9)
    for jj in range(4):
        S=152+4*jj
        if jj==1: a('s_barrier\nds_read_b128 v[160:163], v8\nds_read_b128 v[164:167], v9')
        if jj==2: a('s_waitcnt lgkmcnt(0)')
        P=[(56+(jj*3+ii)*8+2*h, 32+8*ii+2*h) for ii in range(3) for h in range(2)]
        T=lambda i: 168+2*i
        for g,c in P: a(f'v_pk_fma_f32 v[{g}:{g+1}], v[{c}:{c+1}], v[{S}:{S+1}], v[{g}:{g+1}] op_sel_hi:[1,0,1]')
        for g,c in P: a(f'v_pk_fma_f32 v[{g+4}:{g+5}], v[{c+4}:{c+5}], v[{S}:{S+1}], v[{g+4}:{g+5}] op_sel_hi:[1,0,1]')
        for g,c in P: a(f'v_pk_mul_f32 v[{g+4}:{g+5}], v[{g+4}:{g+5}], v[{g}:{g+1}]')
        for g,c in P: a(f'v_pk_mul_f32 v[{g}:{g+1}], v[{g}:{g+1}], v[{S}:{S+1}] op_sel:[0,1] op_sel_hi:[1,1]')
        for i,(g,c) in enumerate(P): a(f'v_pk_mul_f32 v[{T(i)}:{T(i)+1}], v[{g}:{g+1}], v[{g}:{g+1}]')
        for i,(g,c) in enumerate(P): a(f'v_pk_fma_f32 v[{T(i)}:{T(i)+1}], v[{T(i)}:{T(i)+1}], s[34:35], v[6:7]')
        for i,(g,c) in enumerate(P): a(f'v_pk_mul_f32 v[{T(i)}:{T(i)+1}], v[{T(i)}:{T(i)+1}], v[{g}:{g+1}]')
        for i in range(12): a(f'v_exp_f32 v{168+i}, v{168+i}')
        a(f's_add_u32 s27, s21, s{36+jj}\ns_mul_i32 s27, s27, 48')
        for i,(g,c) in enumerate(P): a(f'v_pk_fma_f32 v[{T(i)}:{T(i)+1}], v[{T(i)}:{T(i)+1}], v[{S+2}:{S+3}], v[{S+2}:{S+3}] op_sel_hi:[1,0,0]')
        for i in range(12): a(f'v_rcp_f32 v{168+i}, v{168+i}')
        a(f's_add_u32 s27, s27, s22\ns_lshl_b32 s27, s27, 10\ns_add_u32 s27, s27, {HH}')
        for i,(g,c) in enumerate(P): a(f'v_pk_mul_f32 v[{T(i)}:{T(i)+1}], v[{T(i)}:{T(i)+1}], v[{g+4}:{g+5}]')
        O=184+8*jj
        for i in range(6): a(f'v_cvt_pk_bf16_f32 v{O+i}, v{T(i)}, v{T(i)+1}')
        a(f'''buffer_store_dwordx4 v[{O}:{O+3}], v4, s[28:31], s27 offen
        buffer_store_dwordx2 v[{O+4}:{O+5}], v5, s[28:31], s27 offen''')
    a.stamp(10); a('s_waitcnt vmcnt(0)') if DBG>=0 else 0; a.stamp(11); a.dump(12,18,0,0)
    a('s_endpgm')
    a.lab('L_k2_ld')
    a(f'''s_sub_u32 s18, s18, 4
    v_lshrrev_b32 v3, 4, v1
    v_and_b32 v4, 15, v1
    s_lshl_b32 s19, s18, 3
    s_lshl_b32 s24, s16, 8
    s_add_u32 s24, s24, {HT}
    s_lshl_b32 s26, s18, 11
    s_mul_i32 s27, s18, 3072
    s_mul_i32 s25, s17, {20*12288}
    s_add_u32 s25, s25, s27
    s_add_u32 s25, s25, {WGP}
    s_add_u32 s27, s27, 8192
    v_lshlrev_b32 v12, 4, v1''')
    for pp in range(2):
        a(f'''v_add_u32 v5, {4*pp}, v3
        v_lshlrev_b32 v6, 1, v5
        v_xor_b32 v6, v6, v4
        v_add_u32 v5, s19, v5
        v_lshlrev_b32 v7, 12, v5
        v_lshl_add_u32 v{10+pp}, v6, 4, v7''')
    a('s_waitcnt lgkmcnt(0)')
    a.srd(28,12,0,0x1600000)
    def piece(n):
        s,p=divmod(n,5); sl=(s%NS)*SL
        if p<2: a(f's_add_u32 m0, s26, {sl+1024*p}\ns_add_u32 s32, s24, {s*131072}\nbuffer_load_dwordx4 v{10+p}, s[28:31], s32 offen lds')
        else: a(f's_add_u32 m0, s27, {sl}\ns_add_u32 s32, s25, {s*12288}\nbuffer_load_dwordx4 v12, s[28:31], s32 offen offset:{1024*(p-2)} lds')
    a.stamp(1)
    from k3 import loader_loop
    loader_loop(a,20,piece,int(os.environ.get('PPI2','6')),int(os.environ.get('PRO2','10')),NS)
    a('s_barrier'); a.stamp(10); a.dump(11,18,0,16)
    a.lab('L_k2_end'); a('s_endpgm')
    return desc('k2_kernel',252,64)
```

```python
from common import *
NS=7; SL=20480; RES=NS*SL; K3LDS=RES+4*3072
PPI=int(os.environ.get('PPI3','7')); PRO=int(os.environ.get('PRO3','10')); HA=3
def loader_loop(a, nst, piece, ppi, pro, NS):
    n=0
    while n<pro: piece(n); n+=1
    a.stamp(2)
    for s in range(nst):
        a(f's_waitcnt vmcnt({n-5*(s+1)})')
        if s in (0,1,2,5,10): a.stamp(3+(0,1,2,5,10).index(s))
        a('s_barrier')
        lim=min(5*nst, 5*(max(s-1,-1)+NS+1), max(n+ppi,5*(s+3)))
        while n<lim: piece(n); n+=1
def gen_k3(a):
    a.head('k3_kernel'); a.stamp(0)
    a(f'''s_cmp_ge_u32 s2, 256
    s_cbranch_scc1 L_k3_end
    s_load_dwordx2 s[10:11], s[0:1], 80
    s_load_dwordx2 s[12:13], s[0:1], 96
    s_and_b32 s14, s2, 7
    s_lshr_b32 s15, s2, 3
    s_and_b32 s16, s14, 3
    s_lshl_b32 s16, s16, 3
    s_and_b32 s17, s15, 7
    s_add_u32 s16, s16, s17
    s_lshr_b32 s17, s14, 2
    s_lshl_b32 s17, s17, 2
    s_lshr_b32 s15, s15, 3
    s_add_u32 s17, s17, s15
    v_lshrrev_b32 v2, 6, v0
    v_and_b32 v1, 63, v0
    v_lshlrev_b32 v3, 4, v1
    v_readfirstlane_b32 s18, v2
    s_cmp_ge_u32 s18, 4
    s_cbranch_scc1 L_k3_ld
    s_lshl_b32 s26, s16, 2
    s_add_u32 s26, s26, s18
    s_mul_i32 s24, s26, 49152
    s_add_u32 s24, s24, {HH}
    v_add_u32 v4, {3*SL}, v3
    v_add_u32 v5, {6*SL}, v3
    s_waitcnt lgkmcnt(0)''')
    a.srd(28,12,0,0x1000000); a.srd(40,10,0,2621440)
    Q=[]
    def wait(tag):
        i=max(k for k,t in enumerate(Q) if t==tag); a(f's_waitcnt vmcnt({len(Q)-1-i})')
    HB=lambda s: 192+16*(s%4)
    def hload(s):
        L=[f'buffer_load_dwordx4 v[{HB(s)+4*k}:{HB(s)+4*k+3}], v3, s[28:31], s24 offen offset:{1024*k}' for k in range(4)]
        L[-1]+='\ns_add_u32 s24, s24, 4096'; Q.extend([s]*4); return L
    for s in range(HA):
        for x in hload(s): a(x)
    a(f'''v_lshrrev_b32 v7, 2, v1
    v_and_b32 v8, 3, v1
    v_lshlrev_b32 v8, 3, v8
    v_lshl_add_u32 v8, v7, 5, v8
    s_mul_i32 s44, s18, 3072
    s_add_u32 s44, s44, {RES}
    v_add_u32 v8, s44, v8
    v_lshrrev_b32 v7, 1, v1
    v_lshlrev_b32 v7, 12, v7
    v_and_b32 v9, 1, v1
    v_lshl_add_u32 v7, v9, 4, v7
    s_mul_i32 s45, s17, {80*4096}
    s_lshl_b32 s46, s26, 5
    s_add_u32 s45, s45, s46
    s_add_u32 s45, s45, {HT}
    s_mul_i32 s25, s17, 160
    v_and_b32 v6, 15, v1
    s_lshl_b32 s46, s26, 4
    v_add_u32 v6, s46, v6
    v_mul_u32_u24 v6, 1280, v6
    v_lshrrev_b32 v9, 4, v1
    v_lshl_add_u32 v6, v9, 3, v6
    s_setprio 2''')
    a.stamp(1)
    FB=lambda s: 32+80*(s&1)
    for s in range(13):
        R=[];M=[];H=[]
        if s<12:
            a('s_barrier'); sl=s%NS
            R=[f'ds_read_b128 v[{FB(s)+4*p}:{FB(s)+4*p+3}], v{3+sl//3} offset:{(sl%3)*SL+1024*p}' for p in range(20)]
        if s in (0,1,2,5,10,12): a.stamp(2+(0,1,2,5,10,12).index(s))
        if s>0:
            wait(s-1)
            for k in range(4):
                for i in range(5):
                    A=FB(s-1)+4*(5*k+i); B=HB(s-1)+4*k; C=f'v[{12+4*i}:{15+4*i}]'
                    M.append(f'v_mfma_f32_16x16x32_bf16 {C}, v[{A}:{A+3}], v[{B}:{B+3}], {"0" if s==1 and k==0 else C}')
        if s==12:
            R=[f'ds_read_b64_tr_b16 v[{FB(0)+2*i}:{FB(0)+1+2*i}], v8 offset:{512*i}' for i in range(5)]
        if HA<=s+HA-1<12 : H=hload(s+HA-1)
        if s==8:
            for p in range(3):
                H.append(f's_add_u32 m0, s44, {1024*p}\ns_nop 0\nbuffer_load_dwordx4 v7, s[28:31], s45 offen lds\ns_add_u32 s45, s45, {32*4096}'); Q.append(99)
        for x in H: a(x)
        while R or M:
            if M: a(M.pop(0))
            if R: a(R.pop(0))
        a('s_waitcnt lgkmcnt(0)')
    a.stamp(8)
    for i in range(5):
        H=48+4*i
        for h in range(2):
            a(f'v_lshlrev_b32 v{H+2*h}, 16, v{32+2*i+h}\nv_and_b32 v{H+2*h+1}, 0xffff0000, v{32+2*i+h}')
    for i in range(5):
        C=12+4*i; R=72+4*i; H=48+4*i
        for h in (0,2): a(f'v_cvt_pk_bf16_f32 v{R+h}, v{C+h}, v{C+h+1}')
        for h in (0,2): a(f'v_lshlrev_b32 v{C+h}, 16, v{R+h}\nv_and_b32 v{C+h+1}, 0xffff0000, v{R+h}')
        for h in (0,2): a(f'v_pk_add_f32 v[{C+h}:{C+h+1}], v[{C+h}:{C+h+1}], v[{H+h}:{H+h+1}]')
        a(f'v_cvt_pk_bf16_f32 v{R}, v{C}, v{C+1}\nv_cvt_pk_bf16_f32 v{R+1}, v{C+2}, v{C+3}')
        a(f'buffer_store_dwordx2 v[{R}:{R+1}], v6, s[40:43], s25 offen offset:{32*i}')
    a.stamp(9); a('s_waitcnt vmcnt(0)') if DBG>=0 else 0; a.stamp(10); a.dump(11,18,0,0)
    a('s_endpgm')
    a.lab('L_k3_ld')
    a(f'''s_sub_u32 s18, s18, 4
    s_mul_i32 s26, s18, 5120
    s_mul_i32 s24, s17, 245760
    s_add_u32 s24, s24, s26
    s_add_u32 s24, s24, {WDP}
    s_waitcnt lgkmcnt(0)''')
    a.srd(28,12,0,0x1200000)
    a.stamp(1)
    def piece(n):
        s,p=divmod(n,5)
        a(f's_add_u32 m0, s26, {(s%NS)*SL+1024*p}\ns_add_u32 s25, s24, {s*SL+1024*p}\nbuffer_load_dwordx4 v3, s[28:31], s25 offen lds')
    loader_loop(a,12,piece,PPI,PRO,NS)
    a.dump(8,18,0,16)
    a.lab('L_k3_end'); a('s_endpgm')
    return desc('k3_kernel',256,64)
```

```python
from common import *
K0G=160+128+120
def gen_k0(a):
    a.head('k0_kernel'); a.stamp(0)
    a(f'''s_cmp_ge_u32 s2, {K0G}
    s_cbranch_scc1 L_k0_end
    s_load_dwordx4 s[4:7], s[0:1], 0
    s_load_dwordx4 s[8:11], s[0:1], 16
    s_load_dwordx2 s[12:13], s[0:1], 96
    s_load_dwordx4 s[48:51], s[0:1], 56
    s_cmp_ge_u32 s2, 160
    s_cbranch_scc1 L_k0_o
    s_and_b32 s14, s2, 31
    s_lshr_b32 s15, s2, 5
    v_lshrrev_b32 v1, 5, v0
    v_and_b32 v2, 31, v0
    s_lshl_b32 s16, s14, 6
    v_lshl_add_u32 v3, v1, 3, s16
    s_lshl_b32 s17, s15, 7
    v_lshl_add_u32 v4, v2, 2, s17
    v_mul_u32_u24 v5, 1280, v3
    v_lshl_add_u32 v5, v4, 1, v5
    v_subrev_u32 v6, 3840, v5
    v_lshlrev_b32 v7, 3, v4
    s_movk_i32 s40, 3840
    s_movk_i32 s41, 7680
    s_mov_b32 s19, 0
    s_waitcnt lgkmcnt(0)''')
    a.srd(20,4,0,2621440); a.srd(24,6,0,2621440); a.srd(28,8,0,2621440); a.srd(32,10,0,5120); a.srd(36,12,0,0x800000)
    def rowld(dst, srd, j):
        so=['0','s40','s41'][j//3]; a(f'buffer_load_dwordx2 v[{dst}:{dst+1}], v5, s[{srd}:{srd+3}], {so} offen offset:{(j%3)*1280}')
    a('buffer_load_dwordx4 v[8:11], v7, s[32:35], 0 offen\nbuffer_load_dwordx4 v[12:15], v7, s[32:35], 0 offen offset:16')
    for j in range(3): a(f'buffer_load_dwordx2 v[{16+2*j}:{17+2*j}], v6, s[24:27], 0 offen offset:{j*1280}')
    for j in range(8): rowld(22+2*j,24,j)
    for j in range(8): rowld(38+2*j,28,j)
    for j in range(8): rowld(54+2*j,20,j)
    a(f'''v_and_b32 v7, 7, v2
    v_xor_b32 v7, v7, v1
    v_lshlrev_b32 v7, 4, v7
    v_lshl_add_u32 v7, v2, 9, v7
    v_lshrrev_b32 v3, 3, v0
    v_and_b32 v4, 7, v0
    v_xor_b32 v6, v4, v1
    v_lshlrev_b32 v6, 4, v6
    v_lshl_add_u32 v6, v3, 7, v6
    v_add_u32 v3, s17, v3
    v_lshlrev_b32 v3, 12, v3
    v_lshl_add_u32 v4, v4, 3, s16
    v_lshlrev_b32 v4, 1, v4
    v_sub_u32 v2, v3, v4
    v_add_u32 v2, 4080, v2
    v_add_u32 v1, v3, v4
    v_add_u32 v1, {XT}, v1
    s_mov_b32 s44, 0x05040100
    s_mov_b32 s45, 0x07060302
    s_mov_b32 s46, 0x20000
    s_mov_b32 s47, 0x40000
    s_mov_b32 s52, 0x60000
    s_waitcnt vmcnt(16)''')
    a.stamp(1)
    so=['0','s46','s47','s52']
    for p in range(2):
        for tap in range(4):
            for h in range(2):
                src=8+2*(2*p+h)+(tap>>1); d=70+8*p+2*tap+h
                a(f'v_and_b32 v{d}, 0xffff0000, v{src}' if tap&1 else f'v_lshlrev_b32 v{d}, 16, v{src}')
    for p in range(2):
        for j in range(11): a(f'v_lshlrev_b32 v{88+2*j}, 16, v{16+2*j+p}\nv_and_b32 v{89+2*j}, 0xffff0000, v{16+2*j+p}')
        W=lambda t: f'v[{70+8*p+2*t}:{71+8*p+2*t}]'
        K=lambda j: f'v[{88+2*j}:{89+2*j}]'
        D=lambda j: f'v[{110+2*j}:{111+2*j}]'
        for j in range(8): a(f'v_pk_mul_f32 {D(j)}, {K(j)}, {W(3)}')
        for tap in (2,1,0):
            for j in range(8): a(f'v_pk_fma_f32 {D(j)}, {K(j+3-tap)}, {W(tap)}, {D(j)}')
        if p==0: a('s_waitcnt vmcnt(8)')
        for j in range(8): a(f'v_lshlrev_b32 v{88+2*j}, 16, v{38+2*j+p}\nv_and_b32 v{89+2*j}, 0xffff0000, v{38+2*j+p}')
        for j in range(8): a(f'v_pk_mul_f32 {D(j)}, {D(j)}, {K(j)}')
        for h in range(2):
            O=126+8*p+4*h
            for i in range(4): a(f'v_cvt_pk_bf16_f32 v{O+i}, v{110+2*(7-2*i)+h}, v{110+2*(6-2*i)+h}')
            a(f'ds_write_b128 v7, v[{O}:{O+3}] offset:{128*(2*p+h)}')
    a('s_waitcnt vmcnt(0)')
    for c in range(4):
        O=88+4*c
        for i in range(4): a(f'v_perm_b32 v{O+i}, v{54+2*(2*i+1)+(c>>1)}, v{54+2*(2*i)+(c>>1)}, s{44+(c&1)}')
        a(f'ds_write_b128 v7, v[{O}:{O+3}] offset:{16384+128*c}')
    a('s_waitcnt lgkmcnt(0)\ns_barrier')
    for i in range(8): a(f'ds_read_b128 v[{8+4*i}:{11+4*i}], v6 offset:{4096*i}')
    for i in range(8): a(f's_waitcnt lgkmcnt({7-i})\nbuffer_store_dwordx4 v[{8+4*i}:{11+4*i}], v{2-(i>>2)}, s[36:39], {so[i&3]} offen')
    a.stamp(2); a('s_waitcnt vmcnt(0)') if DBG>=0 else 0; a.stamp(3); a.dump(4,19,0,0)
    a('s_endpgm')
    a.lab('L_k0_o')
    a('''s_cmp_ge_u32 s2, 288
    s_cbranch_scc1 L_k0_p
    v_lshrrev_b32 v2, 6, v0
    v_and_b32 v1, 63, v0
    s_sub_u32 s14, s2, 160
    v_readfirstlane_b32 s15, v2
    s_lshl_b32 s14, s14, 2
    s_add_u32 s14, s14, s15
    s_mul_i32 s15, s14, 5120
    v_lshlrev_b32 v3, 4, v1
    v_lshlrev_b32 v4, 2, v1
    s_add_u32 s16, s15, 2560
    s_waitcnt lgkmcnt(0)''')
    a.srd(20,4,0,2621440); a.srd(36,12,0,0x800000)
    for r in range(4):
        a(f'buffer_load_dwordx4 v[{10+6*r}:{13+6*r}], v3, s[20:23], s{15+(r>>1)} offen offset:{(r&1)*1280}')
        a(f'buffer_load_dword v{14+6*r}, v4, s[20:23], s{15+(r>>1)} offen offset:{(r&1)*1280+1024}')
    a('s_mov_b32 s17, 0x3f803f80\ns_mov_b32 s49, 0x3acccccd')
    for r in range(8): a(f'v_mov_b32 v{40+r}, 0')
    for r in range(4):
        a(f's_waitcnt vmcnt({6-2*r})')
        for i in range(5):
            a(f'v_dot2_f32_bf16 v{40+r}, v{10+6*r+i}, s17, v{40+r}\nv_dot2_f32_bf16 v{44+r}, v{10+6*r+i}, v{10+6*r+i}, v{44+r}')
    a('s_nop 2')
    wave_reduce(a,list(range(40,48)))
    for r in range(4):
        a(f'''v_mul_f32 v{40+r}, s49, v{40+r}
        v_mul_f32 v{44+r}, s49, v{44+r}
        v_fma_f32 v{44+r}, -v{40+r}, v{40+r}, v{44+r}
        v_max_f32 v{44+r}, 0, v{44+r}
        v_cvt_pk_bf16_f32 v{44+r}, v{44+r}, v{44+r}
        v_and_b32 v{44+r}, 0xffff0000, v{44+r}
        v_add_f32 v{44+r}, 0x3727c5ac, v{44+r}
        v_cvt_pk_bf16_f32 v{44+r}, v{44+r}, v{44+r}
        v_and_b32 v{44+r}, 0xffff0000, v{44+r}
        v_sqrt_f32 v{44+r}, v{44+r}
        s_nop 0
        v_cvt_pk_bf16_f32 v{48+r}, v{40+r}, v{44+r}
        v_and_b32 v{52+r}, 0xffff0000, v{48+r}
        v_lshlrev_b32 v{48+r}, 16, v{48+r}
        v_rcp_f32 v{52+r}, v{52+r}''')
    a(f'''s_lshl_b32 s14, s14, 4
    s_add_u32 s14, s14, {ST1}
    v_mov_b32 v3, 0
    s_mov_b32 exec_lo, 0
    s_mov_b32 exec_hi, 0x80000000
    buffer_store_dwordx4 v[48:51], v3, s[36:39], s14 offen
    s_add_u32 s14, s14, {RS1-ST1}
    buffer_store_dwordx4 v[52:55], v3, s[36:39], s14 offen
    s_endpgm''')
    a.lab('L_k0_p')
    if EXP==2: a('s_endpgm')
    a(f'''s_sub_u32 s14, s2, 288
    s_cmp_ge_u32 s14, 60
    s_cselect_b32 s15, 60, 0
    s_sub_u32 s15, s14, s15
    s_lshl_b32 s15, s15, 8
    s_waitcnt lgkmcnt(0)
    s_cmp_ge_u32 s14, 60
    s_cselect_b32 s48, s50, s48
    s_cselect_b32 s49, s51, s49
    s_cselect_b32 s16, 6144, 0''')
    a.srd(20,48,0,1966080); a.srd(36,12,WGP,0x400000)
    pack(a,20,36,192,21846,22,3072,6,20,12,15,16)
    a.lab('L_k0_end'); a('s_endpgm')
    return desc('k0_kernel',144,64)
```

```python
from common import *
from k2 import kq_reduce
CSZ=4128
NCS=108
BO=8*CSZ; K1LDS=BO+5120
def rnd(a, x, y, t):
    a(f'v_cvt_pk_bf16_f32 v{t}, v{x}, v{y}\nv_lshlrev_b32 v{x}, 16, v{t}\nv_and_b32 v{y}, 0xffff0000, v{t}')
def gen_k1(a):
    a.head('k1_kernel'); a.stamp(0)
    a(f'''s_cmp_ge_u32 s2, {NCS+640}
    s_cbranch_scc1 L_k1_end
    s_load_dwordx4 s[4:7], s[0:1], 32
    s_load_dwordx2 s[8:9], s[0:1], 72
    s_load_dwordx2 s[12:13], s[0:1], 96
    v_and_b32 v1, 63, v0
    v_lshrrev_b32 v2, 6, v0
    s_cmp_lt_u32 s2, {NCS}
    s_cbranch_scc1 L_k1_cs
    s_sub_u32 s14, s2, {NCS}
    s_lshl_b32 s15, s14, 12
    s_lshl_b32 s16, s14, 1
    s_and_b32 s17, s16, 2
    s_and_b32 s16, s16, -4
    v_readfirstlane_b32 s18, v2
    v_lshlrev_b32 v3, 4, v0
    v_subrev_u32 v4, 32, v3
    v_subrev_u32 v5, 16, v3
    v_and_b32 v6, 15, v0
    v_bfe_u32 v7, v0, 4, 2
    s_waitcnt lgkmcnt(0)
    s_load_dword s19, s[6:7], s16''')
    a.srd(20,4,0,4096,15); a.srd(24,12,KVR,4096,15); a.srd(28,12,0,0x800000)
    a(f'''s_cmp_lg_u32 s18, 0
    s_cbranch_scc1 L_k1_n0
    s_mov_b64 exec, 3
    buffer_load_dwordx4 v[42:45], v3, s[20:23], 0 offen offset:4064
    buffer_load_dwordx4 v[46:49], v3, s[20:23], 0 offen offset:4080
    s_mov_b64 exec, -1''')
    a.lab('L_k1_n0')
    a(f'''buffer_load_dwordx4 v[10:13], v4, s[20:23], 0 offen
    buffer_load_dwordx4 v[14:17], v5, s[20:23], 0 offen
    v_lshlrev_b32 v8, 4, v7
    v_lshl_add_u32 v8, v2, 7, v8
    v_lshlrev_b32 v9, 5, v6
    v_sub_u32 v8, v8, v9
    v_add_u32 v8, {480+BO}, v8
    s_lshl_b32 s35, s18, 10
    s_add_u32 m0, s35, {BO}
    v_add_u32 v9, 4096, v3
    buffer_load_dwordx4 v3, s[24:27], 0 offen lds
    s_mov_b32 m0, {BO+4096}
    s_nop 0
    buffer_load_dwordx4 v9, s[24:27], 0 offen lds''')
    a(f'''v_lshlrev_b32 v9, 4, v6
    v_lshl_add_u32 v9, v7, 2, v9
    v_lshl_add_u32 v9, v2, 9, v9
    v_lshlrev_b32 v154, 1, v9
    v_sub_u32 v155, 3576, v154
    v_lshlrev_b32 v156, 2, v9
    s_add_u32 s32, s15, {XT}
    s_add_u32 s33, s15, {HT}
    s_mov_b32 s34, {ST1}
    buffer_load_dwordx2 v[138:139], v154, s[28:31], s32 offen
    buffer_load_dwordx2 v[140:141], v154, s[28:31], s32 offen offset:512
    buffer_load_dwordx2 v[142:143], v155, s[24:27], 0 offen offset:512
    buffer_load_dwordx2 v[144:145], v155, s[24:27], 0 offen
    s_mov_b32 s36, {RS1}
    buffer_load_dwordx4 v[146:149], v156, s[28:31], s34 offen
    buffer_load_dwordx4 v[150:153], v156, s[28:31], s34 offen offset:1024
    buffer_load_dwordx4 v[158:161], v156, s[28:31], s36 offen
    buffer_load_dwordx4 v[162:165], v156, s[28:31], s36 offen offset:1024''')
    def build(off):
        for j in range(6): a(f'v_mov_b32 v{18+j}, v{11+j}')
        for j in range(6): a(f'v_alignbit_b32 v{26+j}, v{11+j}, v{10+j}, 16')
        for j in range(6): a(f'v_alignbit_b32 v{32+j}, v{12+j}, v{11+j}, 16')
        for c,R in enumerate([10,26,18,32,12,28,20,34]):
            a(f'ds_write_b128 v3, v[{R}:{R+3}] offset:{c*CSZ+off}')
    a.stamp(1); a('s_waitcnt vmcnt(10)'); a.stamp(2)
    build(0)
    a('''s_cmp_lg_u32 s18, 0
    s_cbranch_scc1 L_k1_nx
    s_mov_b64 exec, 3
    s_nop 2''')
    for e in range(8): a(f'v_mov_b32 v{10+e}, v{42+e}')
    build(4096)
    a('s_mov_b64 exec, -1')
    a.lab('L_k1_nx')
    a(f'''v_add_u32 v4, 1, v6
    v_and_b32 v5, 7, v4
    v_lshrrev_b32 v4, 3, v4
    v_add_u32 v4, v4, v7
    v_lshlrev_b32 v4, 4, v4
    v_mov_b32 v1, {CSZ}
    v_mad_u32_u24 v4, v5, v1, v4
    v_lshl_add_u32 v4, v2, 7, v4
    s_waitcnt lgkmcnt(0) vmcnt(8)
    s_barrier''')
    a.stamp(3)
    def rd(bt):
        r=bt>>1
        for i in range(4):
            av=4*(bt&1)+i; R=10+16*(bt&1)+4*i
            a(f'ds_read_b128 v[{R}:{R+3}], v4 offset:{64*r+512*av}')
    def rdb(r):
        for b in range(8):
            R=74+32*r+4*b
            a(f'ds_read_b128 v[{R}:{R+3}], v8 offset:{3584-512*b+64*r}')
    rd(0); rdb(0)
    seen=set()
    for bt in range(4):
        r=bt>>1
        if bt==0: a('s_waitcnt lgkmcnt(0)'); rd(1); rdb(1)
        elif bt==1: a('s_waitcnt lgkmcnt(8)'); rd(2)
        elif bt==2: a('s_waitcnt lgkmcnt(0)'); rd(3)
        else: a('s_waitcnt lgkmcnt(0)')
        a.stamp(4+bt)
        for i in range(4):
            av=4*(bt&1)+i; A=10+16*(bt&1)+4*i
            for b in range(8-av):
                I=av+b; C=42+4*I; B=74+32*r+4*b
                src=f'v[{C}:{C+3}]' if I in seen else '0'; seen.add(I)
                a(f'v_mfma_f32_16x16x32_bf16 v[{C}:{C+3}], v[{A}:{A+3}], v[{B}:{B+3}], {src}')
    a('''v_and_b32 v1, 63, v0
    v_lshlrev_b32 v1, 4, v1
    v_lshl_add_u32 v5, v2, 13, v1
    v_lshl_add_u32 v1, v2, 11, v1
    s_nop 4
    s_barrier''')
    for I in range(8): a(f'ds_write_b128 v5, v[{42+4*I}:{45+4*I}] offset:{1024*I}')
    a.stamp(8); a('s_waitcnt lgkmcnt(0)\ns_barrier'); a.stamp(9)
    for I in range(2):
        for w in range(4): a(f'ds_read_b128 v[{74+16*I+4*w}:{77+16*I+4*w}], v1 offset:{8192*w+1024*I}')
    a('''s_lshl_b32 s17, s17, 3
    s_lshr_b32 s19, s19, s17
    s_lshl_b32 s19, s19, 16
    s_waitcnt vmcnt(0)''')
    for I in range(2):
        for h in range(2):
            a(f'v_lshlrev_b32 v{10+4*I+2*h}, 16, v{138+2*I+h}\nv_and_b32 v{11+4*I+2*h}, 0xffff0000, v{138+2*I+h}')
            a(f'v_lshlrev_b32 v{18+4*I+3-2*h}, 16, v{142+2*I+h}\nv_and_b32 v{18+4*I+2-2*h}, 0xffff0000, v{142+2*I+h}')
    a('s_mov_b32 s18, s19' if DBG<0 else 's_mov_b32 s37, s18\ns_mov_b32 s18, s19')
    P=lambda r: f'v[{r}:{r+1}]'
    for e in range(0,8,2): a(f'v_pk_add_f32 {P(26+e)}, {P(10+e)}, {P(146+e)} neg_lo:[0,1] neg_hi:[0,1]')
    for e in range(0,8,2): a(f'v_pk_mul_f32 {P(26+e)}, {P(26+e)}, {P(158+e)}')
    a('s_waitcnt lgkmcnt(0)')
    for I in range(2):
        b=74+16*I
        for j in range(0,4,2):
            a(f'v_pk_add_f32 v[{b+j}:{b+j+1}], v[{b+j}:{b+j+1}], v[{b+4+j}:{b+5+j}]')
            a(f'v_pk_add_f32 v[{b+8+j}:{b+9+j}], v[{b+8+j}:{b+9+j}], v[{b+12+j}:{b+13+j}]')
        for j in range(0,4,2):
            a(f'v_pk_add_f32 v[{b+j}:{b+j+1}], v[{b+j}:{b+j+1}], v[{b+8+j}:{b+9+j}]')
    Y=lambda e: 74+16*(e>>2)+(e&3)
    for e in range(0,8,2): a(f'v_pk_fma_f32 {P(18+e)}, {P(18+e)}, s[18:19], {P(Y(e))}')
    for e in range(0,8,2): a(f'v_pk_fma_f32 {P(18+e)}, {P(18+e)}, {P(26+e)}, {P(10+e)}')
    for e in range(0,8,2): a(f'v_cvt_pk_bf16_f32 v{26+e//2}, v{18+e}, v{19+e}')
    a('''buffer_store_dwordx2 v[26:27], v154, s[28:31], s33 offen
    buffer_store_dwordx2 v[28:29], v154, s[28:31], s33 offen offset:512''')
    a.stamp(10); a('s_waitcnt vmcnt(0)') if DBG>=0 else 0; a.stamp(11); a.dump(12,37,1,0); a('s_endpgm')
    a.lab('L_k1_cs')
    a(f'''s_cmp_lt_u32 s2, 60
    s_cbranch_scc1 L_k1_pk
    v_readfirstlane_b32 s18, v2
    s_sub_u32 s14, s2, 60
    s_lshl_b32 s14, s14, 2
    s_add_u32 s14, s14, s18
    s_mul_i32 s15, s14, 43691
    s_lshr_b32 s15, s15, 19
    s_mul_i32 s16, s15, 12
    s_sub_u32 s16, s14, s16
    s_mul_i32 s17, s15, 240
    s_add_u32 s17, s17, s16
    s_lshl_b32 s17, s17, 10
    s_add_u32 s17, s17, {WGP}
    v_lshlrev_b32 v3, 4, v1
    s_mov_b32 s40, 0x3f803f80
    v_mov_b32 v4, 0
    s_waitcnt lgkmcnt(0)''')
    a.srd(28,12,0,0x1600000)
    for i in range(20): a(f'buffer_load_dwordx4 v[{8+4*i}:{11+4*i}], v3, s[28:31], s17 offen\ns_add_u32 s17, s17, 12288')
    a(f'''s_cmp_ge_u32 s16, 6
    s_cselect_b32 s19, {6144-384}, 0
    s_mul_i32 s15, s15, 384
    s_lshl_b32 s16, s16, 6
    s_add_u32 s15, s15, s16
    s_add_u32 s15, s15, s19
    s_add_u32 s15, s15, {CS}
    v_and_b32 v3, 15, v1
    v_lshlrev_b32 v3, 2, v3''')
    for i in range(20):
        a(f's_waitcnt vmcnt({19-i})')
        for e in range(4): a(f'v_dot2_f32_bf16 v4, v{8+4*i+e}, s40, v4')
    a('s_nop 2'); kq_reduce(a,[4],5)
    a('buffer_store_dword v4, v3, s[28:31], s15 offen\ns_endpgm')
    a.lab('L_k1_pk')
    a('s_lshl_b32 s15, s2, 8\ns_mov_b32 s16, 0\ns_waitcnt lgkmcnt(0)')
    a.srd(20,8,0,1966080); a.srd(36,12,WDP,0x200000)
    pack(a,20,36,80,52429,22,1280,5,48,5,15,16)
    a.lab('L_k1_end'); a('s_endpgm')
    return desc('k1_kernel',168,64)
```

```python
from common import *
PF=int(os.environ.get('PF','0'))
K0G=160+128+120+(0,40,70)[PF]
def gen_k0(a):
    a.head('k0_kernel'); a.stamp(0)
    a(f'''s_cmp_ge_u32 s2, {K0G}
    s_cbranch_scc1 L_k0_end
    s_load_dwordx4 s[4:7], s[0:1], 0
    s_load_dwordx4 s[8:11], s[0:1], 16
    s_load_dwordx2 s[12:13], s[0:1], 96
    s_load_dwordx4 s[48:51], s[0:1], 56
    s_cmp_ge_u32 s2, 160
    s_cbranch_scc1 L_k0_o
    s_and_b32 s14, s2, 31
    s_lshr_b32 s15, s2, 5
    v_lshrrev_b32 v1, 5, v0
    v_and_b32 v2, 31, v0
    s_lshl_b32 s16, s14, 6
    v_lshl_add_u32 v3, v1, 3, s16
    s_lshl_b32 s17, s15, 7
    v_lshl_add_u32 v4, v2, 2, s17
    v_mul_u32_u24 v5, 1280, v3
    v_lshl_add_u32 v5, v4, 1, v5
    v_subrev_u32 v6, 3840, v5
    v_lshlrev_b32 v7, 3, v4
    s_movk_i32 s40, 3840
    s_movk_i32 s41, 7680
    s_mov_b32 s19, 0
    s_waitcnt lgkmcnt(0)''')
    a.srd(20,4,0,2621440); a.srd(24,6,0,2621440); a.srd(28,8,0,2621440); a.srd(32,10,0,5120); a.srd(36,12,0,0x800000)
    def rowld(dst, srd, j):
        so=['0','s40','s41'][j//3]; a(f'buffer_load_dwordx2 v[{dst}:{dst+1}], v5, s[{srd}:{srd+3}], {so} offen offset:{(j%3)*1280}')
    a('buffer_load_dwordx4 v[8:11], v7, s[32:35], 0 offen\nbuffer_load_dwordx4 v[12:15], v7, s[32:35], 0 offen offset:16')
    for j in range(3): a(f'buffer_load_dwordx2 v[{16+2*j}:{17+2*j}], v6, s[24:27], 0 offen offset:{j*1280}')
    for j in range(8): rowld(22+2*j,24,j)
    for j in range(8): rowld(38+2*j,28,j)
    for j in range(8): rowld(54+2*j,20,j)
    a(f'''v_and_b32 v7, 7, v2
    v_xor_b32 v7, v7, v1
    v_lshlrev_b32 v7, 4, v7
    v_lshl_add_u32 v7, v2, 9, v7
    v_lshrrev_b32 v3, 3, v0
    v_and_b32 v4, 7, v0
    v_xor_b32 v6, v4, v1
    v_lshlrev_b32 v6, 4, v6
    v_lshl_add_u32 v6, v3, 7, v6
    v_add_u32 v3, s17, v3
    v_lshlrev_b32 v3, 12, v3
    v_lshl_add_u32 v4, v4, 3, s16
    v_lshlrev_b32 v4, 1, v4
    v_sub_u32 v2, v3, v4
    v_add_u32 v2, 4080, v2
    v_add_u32 v1, v3, v4
    v_add_u32 v1, {XT}, v1
    s_mov_b32 s44, 0x05040100
    s_mov_b32 s45, 0x07060302
    s_mov_b32 s46, 0x20000
    s_mov_b32 s47, 0x40000
    s_mov_b32 s52, 0x60000
    s_waitcnt vmcnt(16)''')
    a.stamp(1)
    so=['0','s46','s47','s52']
    for p in range(2):
        for tap in range(4):
            for h in range(2):
                src=8+2*(2*p+h)+(tap>>1); d=70+8*p+2*tap+h
                a(f'v_and_b32 v{d}, 0xffff0000, v{src}' if tap&1 else f'v_lshlrev_b32 v{d}, 16, v{src}')
    for p in range(2):
        for j in range(11): a(f'v_lshlrev_b32 v{88+2*j}, 16, v{16+2*j+p}\nv_and_b32 v{89+2*j}, 0xffff0000, v{16+2*j+p}')
        W=lambda t: f'v[{70+8*p+2*t}:{71+8*p+2*t}]'
        K=lambda j: f'v[{88+2*j}:{89+2*j}]'
        D=lambda j: f'v[{110+2*j}:{111+2*j}]'
        for j in range(8): a(f'v_pk_mul_f32 {D(j)}, {K(j)}, {W(3)}')
        for tap in (2,1,0):
            for j in range(8): a(f'v_pk_fma_f32 {D(j)}, {K(j+3-tap)}, {W(tap)}, {D(j)}')
        if p==0: a('s_waitcnt vmcnt(8)')
        for j in range(8): a(f'v_lshlrev_b32 v{88+2*j}, 16, v{38+2*j+p}\nv_and_b32 v{89+2*j}, 0xffff0000, v{38+2*j+p}')
        for j in range(8): a(f'v_pk_mul_f32 {D(j)}, {D(j)}, {K(j)}')
        for h in range(2):
            O=126+8*p+4*h
            for i in range(4): a(f'v_cvt_pk_bf16_f32 v{O+i}, v{110+2*(7-2*i)+h}, v{110+2*(6-2*i)+h}')
            a(f'ds_write_b128 v7, v[{O}:{O+3}] offset:{128*(2*p+h)}')
    a('s_waitcnt vmcnt(0)')
    for c in range(4):
        O=88+4*c
        for i in range(4): a(f'v_perm_b32 v{O+i}, v{54+2*(2*i+1)+(c>>1)}, v{54+2*(2*i)+(c>>1)}, s{44+(c&1)}')
        a(f'ds_write_b128 v7, v[{O}:{O+3}] offset:{16384+128*c}')
    a('s_waitcnt lgkmcnt(0)\ns_barrier')
    for i in range(8): a(f'ds_read_b128 v[{8+4*i}:{11+4*i}], v6 offset:{4096*i}')
    for i in range(8): a(f's_waitcnt lgkmcnt({7-i})\nbuffer_store_dwordx4 v[{8+4*i}:{11+4*i}], v{2-(i>>2)}, s[36:39], {so[i&3]} offen')
    a.stamp(2); a('s_waitcnt vmcnt(0)') if DBG>=0 else 0; a.stamp(3); a.dump(4,19,0,0)
    a('s_endpgm')
    a.lab('L_k0_o')
    a('''s_cmp_ge_u32 s2, 288
    s_cbranch_scc1 L_k0_p
    v_lshrrev_b32 v2, 6, v0
    v_and_b32 v1, 63, v0
    s_sub_u32 s14, s2, 160
    v_readfirstlane_b32 s15, v2
    s_lshl_b32 s14, s14, 2
    s_add_u32 s14, s14, s15
    s_mul_i32 s15, s14, 5120
    v_lshlrev_b32 v3, 4, v1
    v_lshlrev_b32 v4, 2, v1
    s_add_u32 s16, s15, 2560
    s_waitcnt lgkmcnt(0)''')
    a.srd(20,4,0,2621440); a.srd(36,12,0,0x800000)
    for r in range(4):
        a(f'buffer_load_dwordx4 v[{10+6*r}:{13+6*r}], v3, s[20:23], s{15+(r>>1)} offen offset:{(r&1)*1280}')
        a(f'buffer_load_dword v{14+6*r}, v4, s[20:23], s{15+(r>>1)} offen offset:{(r&1)*1280+1024}')
    a('s_mov_b32 s17, 0x3f803f80\ns_mov_b32 s49, 0x3acccccd')
    for r in range(8): a(f'v_mov_b32 v{40+r}, 0')
    for r in range(4):
        a(f's_waitcnt vmcnt({6-2*r})')
        for i in range(5):
            a(f'v_dot2_f32_bf16 v{40+r}, v{10+6*r+i}, s17, v{40+r}\nv_dot2_f32_bf16 v{44+r}, v{10+6*r+i}, v{10+6*r+i}, v{44+r}')
    a('s_nop 2')
    wave_reduce(a,list(range(40,48)))
    for r in range(4):
        a(f'''v_mul_f32 v{40+r}, s49, v{40+r}
        v_mul_f32 v{44+r}, s49, v{44+r}
        v_fma_f32 v{44+r}, -v{40+r}, v{40+r}, v{44+r}
        v_max_f32 v{44+r}, 0, v{44+r}
        v_cvt_pk_bf16_f32 v{44+r}, v{44+r}, v{44+r}
        v_and_b32 v{44+r}, 0xffff0000, v{44+r}
        v_add_f32 v{44+r}, 0x3727c5ac, v{44+r}
        v_cvt_pk_bf16_f32 v{44+r}, v{44+r}, v{44+r}
        v_and_b32 v{44+r}, 0xffff0000, v{44+r}
        v_sqrt_f32 v{44+r}, v{44+r}
        s_nop 0
        v_cvt_pk_bf16_f32 v{48+r}, v{40+r}, v{44+r}
        v_and_b32 v{52+r}, 0xffff0000, v{48+r}
        v_lshlrev_b32 v{48+r}, 16, v{48+r}
        v_rcp_f32 v{52+r}, v{52+r}''')
    a(f'''s_lshl_b32 s14, s14, 4
    s_add_u32 s14, s14, {ST1}
    v_mov_b32 v3, 0
    s_mov_b32 exec_lo, 0
    s_mov_b32 exec_hi, 0x80000000
    buffer_store_dwordx4 v[48:51], v3, s[36:39], s14 offen
    s_add_u32 s14, s14, {RS1-ST1}
    buffer_store_dwordx4 v[52:55], v3, s[36:39], s14 offen
    s_endpgm''')
    a.lab('L_k0_p')
    if EXP==2: a('s_endpgm')
    if PF:
        a('''s_cmp_lt_u32 s2, 408
        s_cbranch_scc1 L_k0_pk
        s_load_dwordx2 s[4:5], s[0:1], 32
        s_load_dwordx2 s[6:7], s[0:1], 72
        s_sub_u32 s14, s2, 408
        s_lshr_b32 s15, s14, 3
        s_lshl_b32 s15, s15, 19
        s_add_u32 s16, s14, 4
        s_and_b32 s16, s16, 7
        s_lshl_b32 s16, s16, 12
        s_add_u32 s15, s15, s16
        s_sub_u32 s16, s14, 40
        s_lshl_b32 s16, s16, 16
        v_lshlrev_b32 v1, 4, v0
        s_waitcnt lgkmcnt(0)
        s_cmp_ge_u32 s14, 40
        s_cselect_b32 s4, s6, s4
        s_cselect_b32 s5, s7, s5
        s_cselect_b32 s15, s16, s15
        s_mov_b32 s16, 32768
        s_mov_b32 s17, 2621440
        s_cselect_b32 s16, 4096, s16
        s_cselect_b32 s17, 1966080, s17''')
        a.srd(20,4,0,0); a('s_mov_b32 s22, s17')
        for i in range(16): a(f'buffer_load_dwordx4 v[{4+4*i}:{7+4*i}], v1, s[20:23], s15 offen\ns_add_u32 s15, s15, s16')
        a('s_waitcnt vmcnt(0)\ns_endpgm')
        a.lab('L_k0_pk')
    a(f'''s_sub_u32 s14, s2, 288
    s_cmp_ge_u32 s14, 60
    s_cselect_b32 s15, 60, 0
    s_sub_u32 s15, s14, s15
    s_lshl_b32 s15, s15, 8
    s_waitcnt lgkmcnt(0)
    s_cmp_ge_u32 s14, 60
    s_cselect_b32 s48, s50, s48
    s_cselect_b32 s49, s51, s49
    s_cselect_b32 s16, 6144, 0''')
    a.srd(20,48,0,1966080); a.srd(36,12,WGP,0x400000)
    pack(a,20,36,192,21846,22,3072,6,20,12,15,16)
    a.lab('L_k0_end'); a('s_endpgm')
    return desc('k0_kernel',144,64)
```

```python
from common import *
PF=int(os.environ.get('PF','0'))
TL=int(os.environ.get('TL','0'))
K0G=160+128+120+(0,40,70)[PF]
def gen_k0(a):
    a.head('k0_kernel'); a.stamp(0)
    a(f'''s_cmp_ge_u32 s2, {K0G}
    s_cbranch_scc1 L_k0_end
    s_load_dwordx4 s[4:7], s[0:1], 0
    s_load_dwordx4 s[8:11], s[0:1], 16
    s_load_dwordx2 s[12:13], s[0:1], 96
    s_load_dwordx4 s[48:51], s[0:1], 56
    s_cmp_ge_u32 s2, 160
    s_cbranch_scc1 L_k0_o
    s_and_b32 s14, s2, 31
    s_lshr_b32 s15, s2, 5
    v_lshrrev_b32 v1, 5, v0
    v_and_b32 v2, 31, v0
    s_lshl_b32 s16, s14, 6
    v_lshl_add_u32 v3, v1, 3, s16
    s_lshl_b32 s17, s15, 7
    v_lshl_add_u32 v4, v2, 2, s17
    v_mul_u32_u24 v5, 1280, v3
    v_lshl_add_u32 v5, v4, 1, v5
    v_subrev_u32 v6, 3840, v5
    v_lshlrev_b32 v7, 3, v4
    s_movk_i32 s40, 3840
    s_movk_i32 s41, 7680
    s_mov_b32 s19, 0
    s_waitcnt lgkmcnt(0)''')
    a.srd(20,4,0,2621440); a.srd(24,6,0,2621440); a.srd(28,8,0,2621440); a.srd(32,10,0,5120); a.srd(36,12,0,0x800000)
    def rowld(dst, srd, j):
        so=['0','s40','s41'][j//3]; a(f'buffer_load_dwordx2 v[{dst}:{dst+1}], v5, s[{srd}:{srd+3}], {so} offen offset:{(j%3)*1280}')
    a('buffer_load_dwordx4 v[8:11], v7, s[32:35], 0 offen\nbuffer_load_dwordx4 v[12:15], v7, s[32:35], 0 offen offset:16')
    for j in range(3): a(f'buffer_load_dwordx2 v[{16+2*j}:{17+2*j}], v6, s[24:27], 0 offen offset:{j*1280}')
    for j in range(8): rowld(22+2*j,24,j)
    for j in range(8): rowld(38+2*j,28,j)
    for j in range(8): rowld(54+2*j,20,j)
    a(f'''v_and_b32 v7, 7, v2
    v_xor_b32 v7, v7, v1
    v_lshlrev_b32 v7, 4, v7
    v_lshl_add_u32 v7, v2, 9, v7
    v_lshrrev_b32 v3, 3, v0
    v_and_b32 v4, 7, v0
    v_xor_b32 v6, v4, v1
    v_lshlrev_b32 v6, 4, v6
    v_lshl_add_u32 v6, v3, 7, v6
    v_add_u32 v3, s17, v3
    v_lshlrev_b32 v3, 12, v3
    v_lshl_add_u32 v4, v4, 3, s16
    v_lshlrev_b32 v4, 1, v4
    v_sub_u32 v2, v3, v4
    v_add_u32 v2, 4080, v2
    v_add_u32 v1, v3, v4
    v_add_u32 v1, {XT}, v1
    s_mov_b32 s44, 0x05040100
    s_mov_b32 s45, 0x07060302
    s_mov_b32 s46, 0x20000
    s_mov_b32 s47, 0x40000
    s_mov_b32 s52, 0x60000
    s_waitcnt vmcnt(16)''')
    a.stamp(1)
    so=['0','s46','s47','s52']
    for p in range(2):
        for tap in range(4):
            for h in range(2):
                src=8+2*(2*p+h)+(tap>>1); d=70+8*p+2*tap+h
                a(f'v_and_b32 v{d}, 0xffff0000, v{src}' if tap&1 else f'v_lshlrev_b32 v{d}, 16, v{src}')
    for p in range(2):
        for j in range(11): a(f'v_lshlrev_b32 v{88+2*j}, 16, v{16+2*j+p}\nv_and_b32 v{89+2*j}, 0xffff0000, v{16+2*j+p}')
        W=lambda t: f'v[{70+8*p+2*t}:{71+8*p+2*t}]'
        K=lambda j: f'v[{88+2*j}:{89+2*j}]'
        D=lambda j: f'v[{110+2*j}:{111+2*j}]'
        for j in range(8): a(f'v_pk_mul_f32 {D(j)}, {K(j)}, {W(3)}')
        for tap in (2,1,0):
            for j in range(8): a(f'v_pk_fma_f32 {D(j)}, {K(j+3-tap)}, {W(tap)}, {D(j)}')
        if p==0: a('s_waitcnt vmcnt(8)')
        for j in range(8): a(f'v_lshlrev_b32 v{88+2*j}, 16, v{38+2*j+p}\nv_and_b32 v{89+2*j}, 0xffff0000, v{38+2*j+p}')
        for j in range(8): a(f'v_pk_mul_f32 {D(j)}, {D(j)}, {K(j)}')
        for h in range(2):
            O=126+8*p+4*h
            for i in range(4): a(f'v_cvt_pk_bf16_f32 v{O+i}, v{110+2*(7-2*i)+h}, v{110+2*(6-2*i)+h}')
            a(f'ds_write_b128 v7, v[{O}:{O+3}] offset:{128*(2*p+h)}')
    a('s_waitcnt vmcnt(0)')
    for c in range(4):
        O=88+4*c
        for i in range(4): a(f'v_perm_b32 v{O+i}, v{54+2*(2*i+1)+(c>>1)}, v{54+2*(2*i)+(c>>1)}, s{44+(c&1)}')
        a(f'ds_write_b128 v7, v[{O}:{O+3}] offset:{16384+128*c}')
    a('s_waitcnt lgkmcnt(0)\ns_barrier')
    for i in range(8): a(f'ds_read_b128 v[{8+4*i}:{11+4*i}], v6 offset:{4096*i}')
    for i in range(8): a(f's_waitcnt lgkmcnt({7-i})\nbuffer_store_dwordx4 v[{8+4*i}:{11+4*i}], v{2-(i>>2)}, s[36:39], {so[i&3]} offen')
    a.stamp(2); a('s_waitcnt vmcnt(0)') if DBG>=0 else 0; a.stamp(3); a.dump(4,19,0,0)
    a('s_endpgm')
    a.lab('L_k0_o')
    a('''s_cmp_ge_u32 s2, 288
    s_cbranch_scc1 L_k0_p
    v_lshrrev_b32 v2, 6, v0
    v_and_b32 v1, 63, v0
    s_sub_u32 s14, s2, 160
    v_readfirstlane_b32 s15, v2
    s_lshl_b32 s14, s14, 2
    s_add_u32 s14, s14, s15
    s_mul_i32 s15, s14, 5120
    v_lshlrev_b32 v3, 4, v1
    v_lshlrev_b32 v4, 2, v1
    s_add_u32 s16, s15, 2560
    s_waitcnt lgkmcnt(0)''')
    a.srd(20,4,0,2621440); a.srd(36,12,0,0x800000)
    for r in range(4):
        a(f'buffer_load_dwordx4 v[{10+6*r}:{13+6*r}], v3, s[20:23], s{15+(r>>1)} offen offset:{(r&1)*1280}')
        a(f'buffer_load_dword v{14+6*r}, v4, s[20:23], s{15+(r>>1)} offen offset:{(r&1)*1280+1024}')
    a('s_mov_b32 s17, 0x3f803f80\ns_mov_b32 s49, 0x3acccccd')
    for r in range(8): a(f'v_mov_b32 v{40+r}, 0')
    for r in range(4):
        a(f's_waitcnt vmcnt({6-2*r})')
        for i in range(5):
            a(f'v_dot2_f32_bf16 v{40+r}, v{10+6*r+i}, s17, v{40+r}\nv_dot2_f32_bf16 v{44+r}, v{10+6*r+i}, v{10+6*r+i}, v{44+r}')
    a('s_nop 2')
    wave_reduce(a,list(range(40,48)))
    for r in range(4):
        a(f'''v_mul_f32 v{40+r}, s49, v{40+r}
        v_mul_f32 v{44+r}, s49, v{44+r}
        v_fma_f32 v{44+r}, -v{40+r}, v{40+r}, v{44+r}
        v_max_f32 v{44+r}, 0, v{44+r}
        v_cvt_pk_bf16_f32 v{44+r}, v{44+r}, v{44+r}
        v_and_b32 v{44+r}, 0xffff0000, v{44+r}
        v_add_f32 v{44+r}, 0x3727c5ac, v{44+r}
        v_cvt_pk_bf16_f32 v{44+r}, v{44+r}, v{44+r}
        v_and_b32 v{44+r}, 0xffff0000, v{44+r}
        v_sqrt_f32 v{44+r}, v{44+r}
        s_nop 0
        v_cvt_pk_bf16_f32 v{48+r}, v{40+r}, v{44+r}
        v_and_b32 v{52+r}, 0xffff0000, v{48+r}
        v_lshlrev_b32 v{48+r}, 16, v{48+r}
        v_rcp_f32 v{52+r}, v{52+r}''')
    a(f'''s_lshl_b32 s14, s14, 4
    s_add_u32 s14, s14, {ST1}
    v_mov_b32 v3, 0
    s_mov_b32 exec_lo, 0
    s_mov_b32 exec_hi, 0x80000000
    buffer_store_dwordx4 v[48:51], v3, s[36:39], s14 offen
    s_add_u32 s14, s14, {RS1-ST1}
    buffer_store_dwordx4 v[52:55], v3, s[36:39], s14 offen
    s_endpgm''')
    a.lab('L_k0_p')
    if EXP==2: a('s_endpgm')
    if PF:
        a('''s_cmp_lt_u32 s2, 408
        s_cbranch_scc1 L_k0_pk
        s_load_dwordx2 s[52:53], s[0:1], 32
        s_load_dwordx2 s[54:55], s[0:1], 72
        s_load_dwordx2 s[56:57], s[0:1], 80
        s_sub_u32 s14, s2, 408
        s_lshr_b32 s15, s14, 3
        s_lshl_b32 s15, s15, 19
        s_add_u32 s16, s14, 4
        s_and_b32 s16, s16, 7
        s_lshl_b32 s16, s16, 12
        s_add_u32 s15, s15, s16
        s_sub_u32 s16, s14, 40
        s_lshl_b32 s16, s16, 16
        v_lshlrev_b32 v1, 4, v0
        s_waitcnt lgkmcnt(0)
        s_cmp_ge_u32 s14, 40
        s_cselect_b32 s52, s54, s52
        s_cselect_b32 s53, s55, s53
        s_cselect_b32 s15, s16, s15
        s_mov_b32 s16, 32768
        s_mov_b32 s17, 2621440
        s_cselect_b32 s16, 4096, s16
        s_cselect_b32 s17, 1966080, s17''')
        a.srd(20,52,0,0); a('s_mov_b32 s22, s17')
        for i in range(16): a(f'buffer_load_dwordx4 v[{4+4*i}:{7+4*i}], v1, s[20:23], s15 offen\ns_add_u32 s15, s15, s16')
        if TL:
            a.srd(24,12,0,0x1600000); a.srd(28,56,0,2621440)
            a(f'''v_lshlrev_b32 v2, {TL}, v0
            s_mov_b32 s15, 0''')
            for i in range(0x1600000>>(8+TL)):
                a(f'buffer_load_dword v{70+i}, v2, s[24:27], s15 offen\ns_add_u32 s15, s15, {256<<TL}')
            a('s_mov_b32 s15, 0')
            for i in range(-(-2621440>>(8+TL))):
                a(f'buffer_load_dword v{100+i}, v2, s[28:31], s15 offen\ns_add_u32 s15, s15, {256<<TL}')
        a('s_waitcnt vmcnt(0)\ns_endpgm')
        a.lab('L_k0_pk')
    a(f'''s_sub_u32 s14, s2, 288
    s_cmp_ge_u32 s14, 60
    s_cselect_b32 s15, 60, 0
    s_sub_u32 s15, s14, s15
    s_lshl_b32 s15, s15, 8
    s_waitcnt lgkmcnt(0)
    s_cmp_ge_u32 s14, 60
    s_cselect_b32 s48, s50, s48
    s_cselect_b32 s49, s51, s49
    s_cselect_b32 s16, 6144, 0''')
    a.srd(20,48,0,1966080); a.srd(36,12,WGP,0x400000)
    pack(a,20,36,192,21846,22,3072,6,20,12,15,16)
    a.lab('L_k0_end'); a('s_endpgm')
    return desc('k0_kernel',144,64)
```

```python
from common import *
PF=int(os.environ.get('PF','0'))
K0G=160+128+120+(0,40,70)[PF]
def gen_k0(a):
    a.head('k0_kernel'); a.stamp(0)
    a(f'''s_cmp_ge_u32 s2, {K0G}
    s_cbranch_scc1 L_k0_end
    s_load_dwordx4 s[4:7], s[0:1], 0
    s_load_dwordx4 s[8:11], s[0:1], 16
    s_load_dwordx2 s[12:13], s[0:1], 96
    s_load_dwordx4 s[48:51], s[0:1], 56
    s_cmp_ge_u32 s2, 160
    s_cbranch_scc1 L_k0_o
    s_and_b32 s14, s2, 31
    s_lshr_b32 s15, s2, 5
    v_lshrrev_b32 v1, 5, v0
    v_and_b32 v2, 31, v0
    s_lshl_b32 s16, s14, 6
    v_lshl_add_u32 v3, v1, 3, s16
    s_lshl_b32 s17, s15, 7
    v_lshl_add_u32 v4, v2, 2, s17
    v_mul_u32_u24 v5, 1280, v3
    v_lshl_add_u32 v5, v4, 1, v5
    v_subrev_u32 v6, 3840, v5
    v_lshlrev_b32 v7, 3, v4
    s_movk_i32 s40, 3840
    s_movk_i32 s41, 7680
    s_mov_b32 s19, 0
    s_waitcnt lgkmcnt(0)''')
    a.srd(20,4,0,2621440); a.srd(24,6,0,2621440); a.srd(28,8,0,2621440); a.srd(32,10,0,5120); a.srd(36,12,0,0x800000)
    def rowld(dst, srd, j):
        so=['0','s40','s41'][j//3]; a(f'buffer_load_dwordx2 v[{dst}:{dst+1}], v5, s[{srd}:{srd+3}], {so} offen offset:{(j%3)*1280}')
    a('buffer_load_dwordx4 v[8:11], v7, s[32:35], 0 offen\nbuffer_load_dwordx4 v[12:15], v7, s[32:35], 0 offen offset:16')
    for j in range(3): a(f'buffer_load_dwordx2 v[{16+2*j}:{17+2*j}], v6, s[24:27], 0 offen offset:{j*1280}')
    for j in range(8): rowld(22+2*j,24,j)
    for j in range(8): rowld(38+2*j,28,j)
    for j in range(8): rowld(54+2*j,20,j)
    a(f'''v_and_b32 v7, 7, v2
    v_xor_b32 v7, v7, v1
    v_lshlrev_b32 v7, 4, v7
    v_lshl_add_u32 v7, v2, 9, v7
    v_lshrrev_b32 v3, 3, v0
    v_and_b32 v4, 7, v0
    v_xor_b32 v6, v4, v1
    v_lshlrev_b32 v6, 4, v6
    v_lshl_add_u32 v6, v3, 7, v6
    v_add_u32 v3, s17, v3
    v_lshlrev_b32 v3, 12, v3
    v_lshl_add_u32 v4, v4, 3, s16
    v_lshlrev_b32 v4, 1, v4
    v_sub_u32 v2, v3, v4
    v_add_u32 v2, 4080, v2
    v_add_u32 v1, v3, v4
    v_add_u32 v1, {XT}, v1
    s_mov_b32 s44, 0x05040100
    s_mov_b32 s45, 0x07060302
    s_mov_b32 s46, 0x20000
    s_mov_b32 s47, 0x40000
    s_mov_b32 s52, 0x60000
    s_waitcnt vmcnt(16)''')
    a.stamp(1)
    so=['0','s46','s47','s52']
    for p in range(2):
        for tap in range(4):
            for h in range(2):
                src=8+2*(2*p+h)+(tap>>1); d=70+8*p+2*tap+h
                a(f'v_and_b32 v{d}, 0xffff0000, v{src}' if tap&1 else f'v_lshlrev_b32 v{d}, 16, v{src}')
    for p in range(2):
        for j in range(11): a(f'v_lshlrev_b32 v{88+2*j}, 16, v{16+2*j+p}\nv_and_b32 v{89+2*j}, 0xffff0000, v{16+2*j+p}')
        W=lambda t: f'v[{70+8*p+2*t}:{71+8*p+2*t}]'
        K=lambda j: f'v[{88+2*j}:{89+2*j}]'
        D=lambda j: f'v[{110+2*j}:{111+2*j}]'
        for j in range(8): a(f'v_pk_mul_f32 {D(j)}, {K(j)}, {W(3)}')
        for tap in (2,1,0):
            for j in range(8): a(f'v_pk_fma_f32 {D(j)}, {K(j+3-tap)}, {W(tap)}, {D(j)}')
        if p==0: a('s_waitcnt vmcnt(8)')
        for j in range(8): a(f'v_lshlrev_b32 v{88+2*j}, 16, v{38+2*j+p}\nv_and_b32 v{89+2*j}, 0xffff0000, v{38+2*j+p}')
        for j in range(8): a(f'v_pk_mul_f32 {D(j)}, {D(j)}, {K(j)}')
        for h in range(2):
            O=126+8*p+4*h
            for i in range(4): a(f'v_cvt_pk_bf16_f32 v{O+i}, v{110+2*(7-2*i)+h}, v{110+2*(6-2*i)+h}')
            a(f'ds_write_b128 v7, v[{O}:{O+3}] offset:{128*(2*p+h)}')
    a('s_waitcnt vmcnt(0)')
    for c in range(4):
        O=88+4*c
        for i in range(4): a(f'v_perm_b32 v{O+i}, v{54+2*(2*i+1)+(c>>1)}, v{54+2*(2*i)+(c>>1)}, s{44+(c&1)}')
        a(f'ds_write_b128 v7, v[{O}:{O+3}] offset:{16384+128*c}')
    a('s_waitcnt lgkmcnt(0)\ns_barrier')
    for i in range(8): a(f'ds_read_b128 v[{8+4*i}:{11+4*i}], v6 offset:{4096*i}')
    for i in range(8): a(f's_waitcnt lgkmcnt({7-i})\nbuffer_store_dwordx4 v[{8+4*i}:{11+4*i}], v{2-(i>>2)}, s[36:39], {so[i&3]} offen')
    a.stamp(2); a('s_waitcnt vmcnt(0)') if DBG>=0 else 0; a.stamp(3); a.dump(4,19,0,0)
    a('s_endpgm')
    a.lab('L_k0_o')
    a('''s_cmp_ge_u32 s2, 288
    s_cbranch_scc1 L_k0_p
    v_lshrrev_b32 v2, 6, v0
    v_and_b32 v1, 63, v0
    s_sub_u32 s14, s2, 160
    v_readfirstlane_b32 s15, v2
    s_lshl_b32 s14, s14, 2
    s_add_u32 s14, s14, s15
    s_mul_i32 s15, s14, 5120
    v_lshlrev_b32 v3, 4, v1
    v_lshlrev_b32 v4, 2, v1
    s_add_u32 s16, s15, 2560
    s_waitcnt lgkmcnt(0)''')
    a.srd(20,4,0,2621440); a.srd(36,12,0,0x800000)
    for r in range(4):
        a(f'buffer_load_dwordx4 v[{10+6*r}:{13+6*r}], v3, s[20:23], s{15+(r>>1)} offen offset:{(r&1)*1280}')
        a(f'buffer_load_dword v{14+6*r}, v4, s[20:23], s{15+(r>>1)} offen offset:{(r&1)*1280+1024}')
    a('s_mov_b32 s17, 0x3f803f80\ns_mov_b32 s49, 0x3acccccd')
    for r in range(8): a(f'v_mov_b32 v{40+r}, 0')
    for r in range(4):
        a(f's_waitcnt vmcnt({6-2*r})')
        for i in range(5):
            a(f'v_dot2_f32_bf16 v{40+r}, v{10+6*r+i}, s17, v{40+r}\nv_dot2_f32_bf16 v{44+r}, v{10+6*r+i}, v{10+6*r+i}, v{44+r}')
    a('s_nop 2')
    wave_reduce(a,list(range(40,48)))
    for r in range(4):
        a(f'''v_mul_f32 v{40+r}, s49, v{40+r}
        v_mul_f32 v{44+r}, s49, v{44+r}
        v_fma_f32 v{44+r}, -v{40+r}, v{40+r}, v{44+r}
        v_max_f32 v{44+r}, 0, v{44+r}
        v_cvt_pk_bf16_f32 v{44+r}, v{44+r}, v{44+r}
        v_and_b32 v{44+r}, 0xffff0000, v{44+r}
        v_add_f32 v{44+r}, 0x3727c5ac, v{44+r}
        v_cvt_pk_bf16_f32 v{44+r}, v{44+r}, v{44+r}
        v_and_b32 v{44+r}, 0xffff0000, v{44+r}
        v_sqrt_f32 v{44+r}, v{44+r}
        s_nop 0
        v_cvt_pk_bf16_f32 v{48+r}, v{40+r}, v{44+r}
        v_and_b32 v{52+r}, 0xffff0000, v{48+r}
        v_lshlrev_b32 v{48+r}, 16, v{48+r}
        v_rcp_f32 v{52+r}, v{52+r}''')
    a(f'''s_lshl_b32 s14, s14, 4
    s_add_u32 s14, s14, {ST1}
    v_mov_b32 v3, 0
    s_mov_b32 exec_lo, 0
    s_mov_b32 exec_hi, 0x80000000
    buffer_store_dwordx4 v[48:51], v3, s[36:39], s14 offen
    s_add_u32 s14, s14, {RS1-ST1}
    buffer_store_dwordx4 v[52:55], v3, s[36:39], s14 offen
    s_endpgm''')
    a.lab('L_k0_p')
    if EXP==2: a('s_endpgm')
    if PF:
        a('''s_cmp_lt_u32 s2, 408
        s_cbranch_scc1 L_k0_pk
        s_load_dwordx2 s[4:5], s[0:1], 32
        s_load_dwordx2 s[6:7], s[0:1], 72
        s_sub_u32 s14, s2, 408
        s_lshr_b32 s15, s14, 3
        s_lshl_b32 s15, s15, 19
        s_add_u32 s16, s14, 4
        s_and_b32 s16, s16, 7
        s_lshl_b32 s16, s16, 12
        s_add_u32 s15, s15, s16
        s_sub_u32 s16, s14, 40
        s_lshl_b32 s16, s16, 16
        v_lshlrev_b32 v1, 4, v0
        s_waitcnt lgkmcnt(0)
        s_cmp_ge_u32 s14, 40
        s_cselect_b32 s4, s6, s4
        s_cselect_b32 s5, s7, s5
        s_cselect_b32 s15, s16, s15
        s_cselect_b32 s16, 4096, 32768
        s_cselect_b32 s17, 1966080, 2621440''')
        a.srd(20,4,0,0); a('s_mov_b32 s22, s17')
        for i in range(16): a(f'buffer_load_dwordx4 v[{4+4*i}:{7+4*i}], v1, s[20:23], s15 offen\ns_add_u32 s15, s15, s16')
        a('s_waitcnt vmcnt(0)\ns_endpgm')
        a.lab('L_k0_pk')
    a(f'''s_sub_u32 s14, s2, 288
    s_cmp_ge_u32 s14, 60
    s_cselect_b32 s15, 60, 0
    s_sub_u32 s15, s14, s15
    s_lshl_b32 s15, s15, 8
    s_waitcnt lgkmcnt(0)
    s_cmp_ge_u32 s14, 60
    s_cselect_b32 s48, s50, s48
    s_cselect_b32 s49, s51, s49
    s_cselect_b32 s16, 6144, 0''')
    a.srd(20,48,0,1966080); a.srd(36,12,WGP,0x400000)
    pack(a,20,36,192,21846,22,3072,6,20,12,15,16)
    a.lab('L_k0_end'); a('s_endpgm')
    return desc('k0_kernel',144,64)
```

```python
from common import *
NS=7; SL=20480; RES=NS*SL; K3LDS=RES+4*3072
PPI=int(os.environ.get('PPI3','7')); PRO=int(os.environ.get('PRO3','10')); HA=3; NR=int(os.environ.get('NR3','-1'))
def loader_loop(a, nst, piece, ppi, pro, NS):
    n=0
    while n<pro: piece(n); n+=1
    a.stamp(2)
    for s in range(nst):
        a(f's_waitcnt vmcnt({n-5*(s+1)})')
        if s in (0,1,2,5,10): a.stamp(3+(0,1,2,5,10).index(s))
        a('s_barrier')
        lim=min(5*nst, 5*(max(s-1,-1)+NS+1), max(n+ppi,5*(s+3)))
        while n<lim: piece(n); n+=1
def gen_k3(a):
    a.head('k3_kernel'); a.stamp(0)
    a(f'''s_cmp_ge_u32 s2, 256
    s_cbranch_scc1 L_k3_end
    s_load_dwordx2 s[10:11], s[0:1], 80
    s_load_dwordx2 s[12:13], s[0:1], 96
    s_and_b32 s14, s2, 7
    s_lshr_b32 s15, s2, 3
    s_and_b32 s16, s14, 3
    s_lshl_b32 s16, s16, 3
    s_and_b32 s17, s15, 7
    s_add_u32 s16, s16, s17
    s_lshr_b32 s17, s14, 2
    s_lshl_b32 s17, s17, 2
    s_lshr_b32 s15, s15, 3
    s_add_u32 s17, s17, s15
    v_lshrrev_b32 v2, 6, v0
    v_and_b32 v1, 63, v0
    v_lshlrev_b32 v3, 4, v1
    v_readfirstlane_b32 s18, v2
    s_cmp_ge_u32 s18, 4
    s_cbranch_scc1 L_k3_ld
    s_lshl_b32 s26, s16, 2
    s_add_u32 s26, s26, s18
    s_mul_i32 s24, s26, 49152
    s_add_u32 s24, s24, {HH}
    v_add_u32 v4, {3*SL}, v3
    v_add_u32 v5, {6*SL}, v3
    s_waitcnt lgkmcnt(0)''')
    a.srd(28,12,0,0x1000000); a.srd(40,10,0,2621440)
    Q=[]
    def wait(tag):
        i=max(k for k,t in enumerate(Q) if t==tag); a(f's_waitcnt vmcnt({len(Q)-1-i})')
    HB=lambda s: 192+16*(s%4)
    def hload(s):
        L=[f'buffer_load_dwordx4 v[{HB(s)+4*k}:{HB(s)+4*k+3}], v3, s[28:31], s24 offen offset:{1024*k}' for k in range(4)]
        L[-1]+='\ns_add_u32 s24, s24, 4096'; Q.extend([s]*4); return L
    for s in range(HA):
        for x in hload(s): a(x)
    a(f'''v_lshrrev_b32 v7, 2, v1
    v_and_b32 v8, 3, v1
    v_lshlrev_b32 v8, 3, v8
    v_lshl_add_u32 v8, v7, 5, v8
    s_mul_i32 s44, s18, 3072
    s_add_u32 s44, s44, {RES}
    v_add_u32 v8, s44, v8
    v_lshrrev_b32 v7, 1, v1
    v_lshlrev_b32 v7, 12, v7
    v_and_b32 v9, 1, v1
    v_lshl_add_u32 v7, v9, 4, v7
    s_mul_i32 s45, s17, {80*4096}
    s_lshl_b32 s46, s26, 5
    s_add_u32 s45, s45, s46
    s_add_u32 s45, s45, {HT}
    s_mul_i32 s25, s17, 160
    v_and_b32 v6, 15, v1
    s_lshl_b32 s46, s26, 4
    v_add_u32 v6, s46, v6
    v_mul_u32_u24 v6, 1280, v6
    v_lshrrev_b32 v9, 4, v1
    v_lshl_add_u32 v6, v9, 3, v6
    s_setprio 2''')
    a.stamp(1)
    FB=lambda s: 32+80*(s&1)
    for s in range(13):
        R=[];M=[];H=[]
        if s<12:
            a('s_barrier'); sl=s%NS
            R=[f'ds_read_b128 v[{FB(s)+4*p}:{FB(s)+4*p+3}], v{3+sl//3} offset:{(sl%3)*SL+1024*p}' for p in range(20)]
        if s in (0,1,2,5,10,12): a.stamp(2+(0,1,2,5,10,12).index(s))
        if s>0:
            if NR<0: wait(s-1)
            for k in range(4):
                for i in range(5):
                    A=FB(s-1)+4*(5*k+i); B=HB(s-1)+4*k; C=f'v[{12+4*i}:{15+4*i}]'
                    M.append(f'v_mfma_f32_16x16x32_bf16 {C}, v[{A}:{A+3}], v[{B}:{B+3}], {"0" if s==1 and k==0 else C}')
        if s==12:
            R=[f'ds_read_b64_tr_b16 v[{FB(0)+2*i}:{FB(0)+1+2*i}], v8 offset:{512*i}' for i in range(5)]
        if HA<=s+HA-1<12 : H=hload(s+HA-1)
        if s==8:
            for p in range(3):
                H.append(f's_add_u32 m0, s44, {1024*p}\ns_nop 0\nbuffer_load_dwordx4 v7, s[28:31], s45 offen lds\ns_add_u32 s45, s45, {32*4096}'); Q.append(99)
        for x in H: a(x)
        if NR>=0 and s>0:
            if s<12:
                for _ in range(NR): a(R.pop(0))
            wait(s-1)
        while R or M:
            if M: a(M.pop(0))
            if R: a(R.pop(0))
        a('s_waitcnt lgkmcnt(0)')
    a.stamp(8)
    for i in range(5):
        H=48+4*i
        for h in range(2):
            a(f'v_lshlrev_b32 v{H+2*h}, 16, v{32+2*i+h}\nv_and_b32 v{H+2*h+1}, 0xffff0000, v{32+2*i+h}')
    for i in range(5):
        C=12+4*i; R=72+4*i; H=48+4*i
        for h in (0,2): a(f'v_cvt_pk_bf16_f32 v{R+h}, v{C+h}, v{C+h+1}')
        for h in (0,2): a(f'v_lshlrev_b32 v{C+h}, 16, v{R+h}\nv_and_b32 v{C+h+1}, 0xffff0000, v{R+h}')
        for h in (0,2): a(f'v_pk_add_f32 v[{C+h}:{C+h+1}], v[{C+h}:{C+h+1}], v[{H+h}:{H+h+1}]')
        a(f'v_cvt_pk_bf16_f32 v{R}, v{C}, v{C+1}\nv_cvt_pk_bf16_f32 v{R+1}, v{C+2}, v{C+3}')
        a(f'buffer_store_dwordx2 v[{R}:{R+1}], v6, s[40:43], s25 offen offset:{32*i}')
    a.stamp(9); a('s_waitcnt vmcnt(0)') if DBG>=0 else 0; a.stamp(10); a.dump(11,18,0,0)
    a('s_endpgm')
    a.lab('L_k3_ld')
    a(f'''s_sub_u32 s18, s18, 4
    s_mul_i32 s26, s18, 5120
    s_mul_i32 s24, s17, 245760
    s_add_u32 s24, s24, s26
    s_add_u32 s24, s24, {WDP}
    s_waitcnt lgkmcnt(0)''')
    a.srd(28,12,0,0x1200000)
    a.stamp(1)
    def piece(n):
        s,p=divmod(n,5)
        a(f's_add_u32 m0, s26, {(s%NS)*SL+1024*p}\ns_add_u32 s25, s24, {s*SL+1024*p}\nbuffer_load_dwordx4 v3, s[28:31], s25 offen lds')
    loader_loop(a,12,piece,PPI,PRO,NS)
    a.dump(8,18,0,16)
    a.lab('L_k3_end'); a('s_endpgm')
    return desc('k3_kernel',256,64)
```

```python
from common import *
NS=7; SL=20480; RES=NS*SL; K3LDS=RES+4*3072
PPI=int(os.environ.get('PPI3','7')); PRO=int(os.environ.get('PRO3','10')); HA=int(os.environ.get('HA3','3')); NB=HA+1; NR=int(os.environ.get('NR3','-1'))
def loader_loop(a, nst, piece, ppi, pro, NS):
    n=0
    while n<pro: piece(n); n+=1
    a.stamp(2)
    for s in range(nst):
        a(f's_waitcnt vmcnt({n-5*(s+1)})')
        if s in (0,1,2,5,10): a.stamp(3+(0,1,2,5,10).index(s))
        a('s_barrier')
        lim=min(5*nst, 5*(max(s-1,-1)+NS+1), max(n+ppi,5*(s+3)))
        while n<lim: piece(n); n+=1
def gen_k3(a):
    a.head('k3_kernel'); a.stamp(0)
    a(f'''s_cmp_ge_u32 s2, 256
    s_cbranch_scc1 L_k3_end
    s_load_dwordx2 s[10:11], s[0:1], 80
    s_load_dwordx2 s[12:13], s[0:1], 96
    s_and_b32 s14, s2, 7
    s_lshr_b32 s15, s2, 3
    s_and_b32 s16, s14, 3
    s_lshl_b32 s16, s16, 3
    s_and_b32 s17, s15, 7
    s_add_u32 s16, s16, s17
    s_lshr_b32 s17, s14, 2
    s_lshl_b32 s17, s17, 2
    s_lshr_b32 s15, s15, 3
    s_add_u32 s17, s17, s15
    v_lshrrev_b32 v2, 6, v0
    v_and_b32 v1, 63, v0
    v_lshlrev_b32 v3, 4, v1
    v_readfirstlane_b32 s18, v2
    s_cmp_ge_u32 s18, 4
    s_cbranch_scc1 L_k3_ld
    s_lshl_b32 s26, s16, 2
    s_add_u32 s26, s26, s18
    s_mul_i32 s24, s26, 49152
    s_and_b32 s19, s18, 1
    s_lshl_b32 s20, s19, 11
    s_add_u32 s20, s20, {HH}
    s_add_u32 s24, s24, s20
    s_xor_b32 s27, s26, 1
    s_mul_i32 s27, s27, 49152
    s_add_u32 s27, s27, s20
    s_mul_i32 s19, s19, 10240
    v_add_u32 v10, s19, v3
    v_add_u32 v4, {3*SL}, v10
    v_add_u32 v5, {6*SL}, v10
    s_mul_i32 s19, s18, 5120
    v_add_u32 v11, s19, v3
    s_xor_b32 s19, s18, 1
    s_mul_i32 s19, s19, 5120
    v_add_u32 v2, s19, v3
    s_waitcnt lgkmcnt(0)''')
    a.srd(28,12,0,0x1000000); a.srd(40,10,0,2621440)
    Q=[]
    def wait(tag):
        i=max(k for k,t in enumerate(Q) if t==tag); a(f's_waitcnt vmcnt({0 if tag==11 else len(Q)-1-i})')
    HB=lambda s: 256-16*NB+16*(s%NB)
    def hload(s):
        L=[f'buffer_load_dwordx4 v[{HB(s)+4*k}:{HB(s)+4*k+3}], v3, s[28:31], s{(24,27)[k>>1]} offen offset:{1024*(k&1)}' for k in range(4)]
        L[-1]+='\ns_add_u32 s24, s24, 4096\ns_add_u32 s27, s27, 4096'; Q.extend([s]*4); return L
    for s in range(HA):
        for x in hload(s): a(x)
    a(f'''v_lshrrev_b32 v7, 2, v1
    v_and_b32 v8, 3, v1
    v_lshlrev_b32 v8, 3, v8
    v_lshl_add_u32 v8, v7, 5, v8
    s_mul_i32 s44, s18, 3072
    s_add_u32 s44, s44, {RES}
    v_add_u32 v8, s44, v8
    v_lshrrev_b32 v7, 1, v1
    v_lshlrev_b32 v7, 12, v7
    v_and_b32 v9, 1, v1
    v_lshl_add_u32 v7, v9, 4, v7
    s_mul_i32 s45, s17, {80*4096}
    s_lshl_b32 s46, s26, 5
    s_add_u32 s45, s45, s46
    s_add_u32 s45, s45, {HT}
    s_mul_i32 s25, s17, 160
    v_and_b32 v6, 15, v1
    s_lshl_b32 s46, s26, 4
    v_add_u32 v6, s46, v6
    v_mul_u32_u24 v6, 1280, v6
    v_lshrrev_b32 v9, 4, v1
    v_lshl_add_u32 v6, v9, 3, v6
    s_setprio 2''')
    a.stamp(1)
    FB=lambda s: 52+40*(s&1)
    for s in range(13):
        R=[];M=[];H=[]
        if s<12:
            a('s_barrier'); sl=s%NS
            R=[f'ds_read_b128 v[{FB(s)+4*p}:{FB(s)+4*p+3}], v{(10,4,5)[sl//3]} offset:{(sl%3)*SL+1024*p}' for p in range(10)]
        if s in (0,1,2,5,10,12): a.stamp(2+(0,1,2,5,10,12).index(s))
        if s>0:
            if NR<0: wait(s-1)
            for j,k in ((1,0),(0,0),(1,1),(0,1)):
                for i in range(5):
                    A=FB(s-1)+4*(5*k+i); B=HB(s-1)+4*(2*j+k); C=f'v[{12+4*(5*j+i)}:{15+4*(5*j+i)}]'
                    M.append(f'v_mfma_f32_16x16x32_bf16 {C}, v[{A}:{A+3}], v[{B}:{B+3}], {"0" if s==1 and k==0 else C}')
        if s==12:
            R=[f'ds_read_b64_tr_b16 v[{FB(0)+2*i}:{FB(0)+1+2*i}], v8 offset:{512*i}' for i in range(5)]
        if HA<=s+HA-1<12 : H=hload(s+HA-1)
        if s==8:
            for p in range(3):
                H.append(f's_add_u32 m0, s44, {1024*p}\ns_nop 0\nbuffer_load_dwordx4 v7, s[28:31], s45 offen lds\ns_add_u32 s45, s45, {32*4096}'); Q.append(99)
        for x in H: a(x)
        if NR>=0 and s>0:
            if s<12:
                for _ in range(NR): a(R.pop(0))
            wait(s-1)
        while R or M:
            if M: a(M.pop(0))
            if M and s<12: a(M.pop(0))
            if R: a(R.pop(0))
        if s==12:
            a('s_nop 7')
            for i in range(5): a(f'ds_write_b128 v11, v[{32+4*i}:{35+4*i}] offset:{1024*i}')
        a('s_waitcnt lgkmcnt(0)')
    a.stamp(8)
    a('s_barrier')
    for i in range(5): a(f'ds_read_b128 v[{112+4*i}:{115+4*i}], v2 offset:{1024*i}')
    for i in range(5):
        H=64+4*i
        for h in range(2):
            a(f'v_lshlrev_b32 v{H+2*h}, 16, v{52+2*i+h}\nv_and_b32 v{H+2*h+1}, 0xffff0000, v{52+2*i+h}')
    for i in range(5):
        C=12+4*i; R=88+4*i; H=64+4*i
        a(f's_waitcnt lgkmcnt({4-i})')
        for h in (0,2): a(f'v_pk_add_f32 v[{C+h}:{C+h+1}], v[{C+h}:{C+h+1}], v[{112+4*i+h}:{113+4*i+h}]')
        for h in (0,2): a(f'v_cvt_pk_bf16_f32 v{R+h}, v{C+h}, v{C+h+1}')
        for h in (0,2): a(f'v_lshlrev_b32 v{C+h}, 16, v{R+h}\nv_and_b32 v{C+h+1}, 0xffff0000, v{R+h}')
        for h in (0,2): a(f'v_pk_add_f32 v[{C+h}:{C+h+1}], v[{C+h}:{C+h+1}], v[{H+h}:{H+h+1}]')
        a(f'v_cvt_pk_bf16_f32 v{R}, v{C}, v{C+1}\nv_cvt_pk_bf16_f32 v{R+1}, v{C+2}, v{C+3}')
        a(f'buffer_store_dwordx2 v[{R}:{R+1}], v6, s[40:43], s25 offen offset:{32*i}')
    a.stamp(9); a('s_waitcnt vmcnt(0)') if DBG>=0 else 0; a.stamp(10); a.dump(11,18,0,0)
    a('s_endpgm')
    a.lab('L_k3_ld')
    a(f'''s_sub_u32 s18, s18, 4
    s_mul_i32 s26, s18, 5120
    s_mul_i32 s24, s17, 245760
    s_add_u32 s24, s24, s26
    s_add_u32 s24, s24, {WDP}
    s_waitcnt lgkmcnt(0)''')
    a.srd(28,12,0,0x1200000)
    a.stamp(1)
    def piece(n):
        s,p=divmod(n,5)
        a(f's_add_u32 m0, s26, {(s%NS)*SL+1024*p}\ns_add_u32 s25, s24, {s*SL+1024*p}\nbuffer_load_dwordx4 v3, s[28:31], s25 offen lds')
    loader_loop(a,12,piece,PPI,PRO,NS)
    a('s_barrier')
    a.dump(8,18,0,16)
    a.lab('L_k3_end'); a('s_endpgm')
    return desc('k3_kernel',256,64)
```
